```python
import torch

def _softmax(x, axis=-1):
    return torch.softmax(x, dim=axis)
def _gelu(x):
    return torch.nn.functional.gelu(x, approximate="tanh")
def _silu(x):
    return torch.nn.functional.silu(x)
def _sigmoid(x):
    return torch.sigmoid(x)
def _layernorm(x, axis=-1, eps=1e-5):
    m = x.mean(dim=axis, keepdim=True)
    v = x.var(dim=axis, keepdim=True, unbiased=False)
    return (x - m) / torch.sqrt(v + eps)
def _scatter_add(tgt, idx, src, axis=0):
    return tgt.clone().index_add_(axis, idx, src)
def _segment_sum(src, seg, n):
    out = torch.zeros((n,) + src.shape[1:], dtype=src.dtype)
    return out.index_add_(0, seg, src)
def _pad(x, pw):
    flat = tuple(v for pair in reversed(pw) for v in pair)
    return torch.nn.functional.pad(x, flat)

kernel_name = 'recurrent_scan__compressed_kv_cla__dense_activation_silu__decode'

def setup_inputs():

    _w = (lambda a: (lambda t: t.to(torch.bfloat16) if t.is_floating_point() else t)(torch.as_tensor(a)))
    def _A_setup():
        B, H, Sq, Sk, D, M = 1, 32, 1, 32768, 128, 512
        Dc = 4 * D
        return {
            "x": _w((lambda *s: torch.randn(*s, dtype=torch.bfloat16) * 0.1)(B, Sq, M)),
            "c_kv": _w((lambda *s: torch.randn(*s, dtype=torch.bfloat16) * 3.2)(B, Sk, Dc)),
            "w_q": _w((lambda *s: torch.randn(*s, dtype=torch.bfloat16) * 0.8)(M, H, D) * (M ** -0.5)),
            "w_uk": _w((lambda *s: torch.randn(*s, dtype=torch.bfloat16) * 0.8)(Dc, H, D) * (Dc ** -0.5)),
            "w_uv": _w((lambda *s: torch.randn(*s, dtype=torch.bfloat16) * 3.2)(Dc, H, D) * (Dc ** -0.5)),
            "w_o": _w((lambda *s: torch.randn(*s, dtype=torch.bfloat16) * 3.2)(H, D, M) * ((H * D) ** -0.5)),
        }
    _A_in = _A_setup()

    def _B_setup():
        B, S, D, F = 1, 1, 512, 1376
        return {
            "x": _w((lambda *s: torch.randn(*s, dtype=torch.bfloat16) * 0.1)(B, S, D)),
            "w1": _w((lambda *s: torch.randn(*s, dtype=torch.bfloat16) * 3.2)(D, F) * (D ** -0.5)),
            "w2": _w((lambda *s: torch.randn(*s, dtype=torch.bfloat16) * 0.8)(F, D) * (F ** -0.5)),
        }
    _B_in = _B_setup()

    return {
        "A_x": _A_in["x"],
        "A_c_kv": _A_in["c_kv"],
        "A_w_q": _A_in["w_q"],
        "A_w_uk": _A_in["w_uk"],
        "A_w_uv": _A_in["w_uv"],
        "A_w_o": _A_in["w_o"],
        "B_x": _B_in["x"],
        "B_w1": _B_in["w1"],
        "B_w2": _B_in["w2"],
    }

def reference(A_x, A_c_kv, A_w_q, A_w_uk, A_w_uv, A_w_o, B_x, B_w1, B_w2):
    def _A_ref(x, c_kv, w_q, w_uk, w_uv, w_o):
        B, Sq, M = x.shape[0], x.shape[1], x.shape[2]
        Sk = c_kv.shape[1]
        H, D = w_q.shape[1], w_q.shape[2]
        q = torch.einsum("bqm,mhd->bhqd", x, w_q)
        k = torch.einsum("bkc,chd->bhkd", c_kv, w_uk)
        v = torch.einsum("bkc,chd->bhkd", c_kv, w_uv)
        scores = torch.einsum("bhqd,bhkd->bhqk", q, k) * (D ** -0.5)
        off = Sk - Sq
        qi = torch.arange(Sq)[:, None]
        kj = torch.arange(Sk)[None, :]
        cmask = kj <= (qi + off)
        scores = torch.where(cmask[None, None], scores, -1e9)
        p = _softmax(scores, axis=-1)
        ctx = torch.einsum("bhqk,bhkd->bhqd", p, v)
        return torch.einsum("bhqd,hdm->bqm", ctx, w_o)

    def _B_ref(x, w1, w2):
        h = torch.einsum("bsd,df->bsf", x, w1)
        h = _silu(h)
        out = torch.einsum("bsf,fd->bsd", h, w2)
        return out

    x = A_x
    xn = _layernorm(x, axis=-1)
    s = _A_ref(xn, A_c_kv, A_w_q, A_w_uk, A_w_uv, A_w_o)
    g = _silu(_B_ref(xn, B_w1, B_w2))
    return x + s * g
```

```python
NAME = "recurrent_scan__compressed_kv_cla__dense_activation_silu__decode"
HEADER = open("cdna_kernels/" + NAME + ".s.ref").read().split("; @launch")[0]

class Asm:
    def __init__(self):
        self.lines = []
        self.nlab = 0
    def __call__(self, s):
        for l in s.strip("\n").split("\n"):
            l = l.strip()
            if l.endswith(":") or l.startswith("."):
                self.lines.append(l)
            elif l:
                self.lines.append("    " + l)
    def c(self, s):
        self.lines.append("    ; " + s)
    def label(self, p="L"):
        self.nlab += 1
        return f"{p}_{self.nlab}"
    def text(self):
        return "\n".join(self.lines) + "\n"

def wrap(body, grid, block, lds, vgpr=256, sgpr=102, accum=None):
    accum = accum if accum is not None else (min(vgpr, 256) + 3) // 4 * 4
    k = NAME + "_kernel"
    return (HEADER + f"; @launch grid=({grid},1,1) block=({block},1,1) lds={lds}\n"
        + f""".amdgcn_target "amdgcn-amd-amdhsa--gfx950"
.text
.globl {k}
.p2align 8
.type {k},@function
{k}:
""" + body + f""".section .rodata,"a"
.p2align 6
.amdhsa_kernel {k}
  .amdhsa_next_free_vgpr {vgpr}
  .amdhsa_next_free_sgpr {sgpr}
  .amdhsa_accum_offset {accum}
  .amdhsa_group_segment_fixed_size 0
  .amdhsa_kernarg_size 96
  .amdhsa_user_sgpr_count 2
  .amdhsa_user_sgpr_kernarg_segment_ptr 1
  .amdhsa_system_sgpr_workgroup_id_x 1
  .amdhsa_float_denorm_mode_32 3
.end_amdhsa_kernel
""")
```

```python
import re

TRANS = ("v_exp_f32", "v_log_f32", "v_rcp_f32", "v_rsq_f32", "v_sqrt_f32", "v_sin_f32", "v_cos_f32", "v_rcp_iflag_f32")

def regs(tok):
    tok = tok.strip()
    tok = re.sub(r"^(-|abs\(|\|)+", "", tok); tok = tok.rstrip(")|")
    m = re.fullmatch(r"([vsa])(\d+)", tok)
    if m: return {(m.group(1), int(m.group(2)))}
    m = re.fullmatch(r"([vsa])\[(\d+):(\d+)\]", tok)
    if m: return {(m.group(1), i) for i in range(int(m.group(2)), int(m.group(3)) + 1)}
    if tok == "vcc": return {("s", "vcc")}
    if tok in ("vcc_lo", "vcc_hi"): return {("s", "vcc")}
    if tok == "exec": return {("s", "exec")}
    if tok == "m0": return {("s", "m0")}
    return set()

class I:
    pass

def parse(line):
    s = line.split(";")[0].strip()
    if not s or s.endswith(":") or s.startswith("."):
        return None
    parts = s.split(None, 1)
    op = parts[0]
    rest = parts[1] if len(parts) > 1 else ""
    ops = []; depth = 0; cur = ""
    for ch in rest:
        if ch in "[(": depth += 1
        if ch in "])": depth -= 1
        if ch == "," and depth == 0:
            ops.append(cur.strip()); cur = ""
        else:
            cur += ch
    if cur.strip(): ops.append(cur.strip())
    mods = ""
    if ops:
        last = ops[-1].split(None, 1)
        ops[-1] = last[0]
        mods = last[1] if len(last) > 1 else ""
    i = I(); i.op = op; i.ops = ops; i.mods = mods
    base = re.sub(r"_(e32|e64|dpp|sdwa)$", "", op)
    i.base = base
    i.w = set(); i.r = set(); i.cls = "other"; i.ws = 1
    i.dpp = op.endswith("_dpp") or any(k in mods for k in ("quad_perm", "row_", "wave_"))
    R = [regs(o) for o in ops]
    if op == "s_nop":
        i.ws = int(ops[0], 0) + 1; i.cls = "salu"
    elif op.startswith("v_mfma"):
        i.cls = "mfma"; i.w = R[0]; i.A = R[1]; i.B = R[2]; i.C = R[3]; i.r = R[1] | R[2] | R[3]
        i.passes = 8 if "32x32x16" in op else 4 if "16x16x32" in op else 16
    elif op.startswith("v_"):
        i.cls = "valu"
        if base.startswith("v_permlane") and "swap" in base:
            i.w = R[0] | R[1]; i.r = R[0] | R[1]
        elif base.startswith("v_cmp"):
            i.w = R[0]; i.r = set().union(*R[1:])
        elif base in ("v_add_co_u32", "v_sub_co_u32", "v_addc_co_u32", "v_subb_co_u32"):
            i.w = R[0] | R[1]; i.r = set().union(*R[2:])
        else:
            i.w = R[0]; i.r = set().union(*R[1:]) if len(R) > 1 else set()
            if base in ("v_fmac_f32", "v_dot2c_f32_bf16", "v_pk_fmac_f16") or i.dpp or base == "v_writelane_b32":
                i.r |= R[0]
            if base == "v_cndmask_b32" and len(R) == 3: i.r |= {("s", "vcc")}
        i.src0 = R[1] if len(R) > 1 else set()
    elif op.startswith(("buffer_", "global_", "flat_")):
        i.cls = "vmem"
        lds = re.search(r"\blds\b", mods) is not None or "_lds_" in op
        i.lds = lds
        if "load" in op and not lds:
            i.w = R[0]; i.r = set().union(*R[1:])
        else:
            i.r = set().union(*R) if R else set()
        if lds: i.r |= {("s", "m0")}
        i.widestore = ("store" in op) and ("x4" in op or "x3" in op)
        if i.widestore:
            i.data = R[0] if op.startswith("buffer_") else R[1]
    elif op.startswith("ds_"):
        i.cls = "ds"
        if op.startswith(("ds_read", "ds_bpermute", "ds_permute", "ds_swizzle")):
            i.w = R[0]; i.r = set().union(*R[1:])
        else:
            i.r = set().union(*R)
    elif op.startswith("s_"):
        i.cls = "salu"
        if op.startswith(("s_cmp", "s_bitcmp", "s_cbranch", "s_branch", "s_waitcnt", "s_barrier", "s_sleep", "s_setprio", "s_endpgm")):
            i.r = set().union(*R) if R else set()
        else:
            i.w = R[0] if R else set(); i.r = set().union(*R[1:]) if len(R) > 1 else set()
            if "saveexec" in op: i.w |= {("s", "exec")}
    return i

def need(p, c):
    n = 0
    pv = {x for x in p.w if x[0] in "va"}; ps = {x for x in p.w if x[0] == "s"}
    if p.cls == "valu":
        if c.cls == "vmem" and ps & c.r: n = max(n, 5)
        if c.cls == "valu":
            if c.dpp and pv & c.r: n = max(n, 2)
            if ps & c.r:
                n = max(n, 2)
                if c.base in ("v_readlane_b32", "v_writelane_b32"): n = max(n, 4)
            if c.base in ("v_readlane_b32", "v_readfirstlane_b32") and pv & c.r: n = max(n, 1)
            if p.base in TRANS and c.base not in TRANS and pv & c.r: n = max(n, 1)
            if c.base.startswith("v_permlane") and pv & c.r: n = max(n, 2)
            if "sdwa" in p.op and pv & (c.r | c.w): n = max(n, 1)
        if p.base in TRANS and c.cls in ("mfma", "vmem", "ds") and pv & c.r: n = max(n, 1)
        if c.cls == "salu" and ps & c.r: n = max(n, 1)
        if c.cls == "mfma" and pv & c.r: n = max(n, 2)
        if p.base.startswith("v_dot"):
            if c.cls in ("valu", "vmem", "ds", "mfma") and pv & (c.r | c.w):
                if c.cls == "valu" and c.base == p.base:
                    ab = set()
                    for o in c.ops[1:3]: ab |= regs(o)
                    if pv & ab: n = max(n, 3)
                else:
                    n = max(n, 3)
    if p.cls == "salu" and ("s", "m0") in p.w and c.cls == "vmem" and getattr(c, "lds", False): n = max(n, 1)
    if p.cls == "vmem" and getattr(p, "widestore", False):
        if p.data & c.w: n = max(n, 2 if c.cls == "valu" else 1)
    if p.cls == "mfma":
        big = {4: 8, 8: 12, 16: 20}[p.passes]; ov = {4: 6, 8: 10, 16: 18}[p.passes]; war = {4: 3, 8: 7, 16: 15}[p.passes]
        if c.cls == "mfma":
            if p.w & (c.A | c.B): n = max(n, big)
            if p.w & c.C and not (p.w == c.C and p.passes == c.passes): n = max(n, ov)
            if p.w & c.w and not (p.w == c.C): n = max(n, ov)
        elif c.cls in ("valu", "vmem", "ds"):
            if p.w & (c.r | c.w): n = max(n, big)
            if c.cls == "valu" and p.C & c.w: n = max(n, war)
            if c.cls in ("vmem", "ds") and p.C & c.w: n = max(n, war)
    return n

def pad(lines):
    out = []; hist = []
    nins = 0
    for line in lines:
        c = parse(line)
        if c is None:
            out.append(line); continue
        req = 0
        d = 0
        for p in reversed(hist):
            k = need(p, c) - d
            if k > req: req = k
            d += p.ws
            if d > 24: break
        while req > 0:
            k = min(req, 16)
            out.append(f"    s_nop {k-1}")
            hist.append(parse(f"s_nop {k-1}")); nins += 1
            req -= k
        out.append(line); hist.append(c)
        if c.op in ("s_branch", "s_endpgm"): hist = []
        hist = hist[-30:]
    return out
```

```python
import sys, argparse
from asmlib import *
import hazard

WS_EPOCH = 0
WS_QP = 0x10000
WS_QL = 0x60000
WS_LSE = 0x80000
WS_FA = 0x100000
WS_FF = 0x200000
WS_OP = 0x1000000
WS_STAMP = 0x8000000
QIMG = 112 * 1024
PBUF = 128 * 1024
SC = 144 * 1024
FL_CLR, FL_OWN, FL_QRDY, FL_QCONS, FL_DISS, FL_HRDY = 0, 16, 32, 48, 64, 80
SC_MX = 256; SC_SM = 768; SC_HV = 1280; SC_R1 = 2048; SC_R3 = 4096; SC_R4 = 4608
R2 = 0
LDS_BYTES = 160 * 1024

sX, sCKV, sWQ, sWUK, sWUV, sWO, sW1, sW2, sOUT, sWSP = 4, 6, 8, 10, 12, 14, 18, 20, 22, 26
sWAVE, sH, sJ, sA = 28, 29, 30, 31
sT = 32
sEX = 34
sWS = 36
sRA, sRB, sRC = 40, 44, 48
sPL, sPH = 96, 97
sCNT = 98
sRDY = 99
STAMP0 = 64

class Cfg:
    depth = 5
    nt_c = " nt"; nt_w = " nt"; nt_wo = ""
    sent_op = False
    stamps = False
    spin = 20000

def gen(cfg):
    a = Asm()
    nst = [0, 0]
    def stamp(k):
        if cfg.stamps:
            a(f"s_memrealtime s[{STAMP0+2*k}:{STAMP0+2*k+1}]")
            a("s_waitcnt lgkmcnt(0)")
    def srd(d, base, size):
        a(f"s_mov_b32 s{d}, s{base}\ns_mov_b32 s{d+1}, s{base+1}\ns_mov_b32 s{d+2}, {hex(size)}\ns_mov_b32 s{d+3}, 0x20000")
    def V(b, n=1):
        return f"v{b}" if n == 1 else f"v[{b}:{b+n-1}]"
    def S(b, n=1):
        return f"s{b}" if n == 1 else f"s[{b}:{b+n-1}]"
    def set_flag(off, vtmp, vaddr, idx_s=None):
        a(f"v_mov_b32 v{vtmp}, 1")
        a(f"ds_write_b32 v{vaddr}, v{vtmp} offset:{off}")
    def wait_flags(off, vt, vsc, n=4):
        L = a.label("wf"); D = a.label("wfd")
        a(f"s_mov_b32 s{sCNT}, {cfg.spin}")
        a(f"{L}:")
        if n == 4:
            a(f"ds_read_b128 v[{vt}:{vt+3}], v{vsc} offset:{off}")
            a("s_waitcnt lgkmcnt(0)")
            a(f"v_and_b32 v{vt}, v{vt}, v{vt+1}\nv_and_b32 v{vt+2}, v{vt+2}, v{vt+3}\nv_and_b32 v{vt}, v{vt}, v{vt+2}")
        else:
            a(f"ds_read_b32 v{vt}, v{vsc} offset:{off}")
            a("s_waitcnt lgkmcnt(0)")
        a(f"v_readfirstlane_b32 s101, v{vt}")
        a(f"s_cmp_lg_u32 s101, 0\ns_cbranch_scc1 {D}")
        a(f"s_sleep 1\ns_sub_u32 s{sCNT}, s{sCNT}, 1\ns_cmp_lg_u32 s{sCNT}, 0\ns_cbranch_scc1 {L}")
        a(f"{D}:")
    def allreduce64(v, t, op="v_add_f32"):
        for m in ("quad_perm:[1,0,3,2]", "quad_perm:[2,3,0,1]", "row_half_mirror", "row_mirror"):
            a(f"{op}_dpp v{v}, v{v}, v{v} {m} row_mask:0xf bank_mask:0xf")
        a(f"v_mov_b32 v{t}, v{v}\nv_permlane16_swap_b32 v{t}, v{v}\n{op} v{v}, v{v}, v{t}")
        a(f"v_mov_b32 v{t}, v{v}\nv_permlane32_swap_b32 v{t}, v{v}\n{op} v{v}, v{v}, v{t}")
    def bf16_round(v, t=None):
        a(f"v_cvt_pk_bf16_f32 v{v}, v{v}, v{v}\nv_and_b32 v{v}, 0xffff0000, v{v}")
    def ln_stats(vx, vt):
        u = vt + 4
        for e in range(4):
            a(f"v_lshlrev_b32 v{u+2*e}, 16, v{vx+e}\nv_and_b32 v{u+2*e+1}, 0xffff0000, v{vx+e}")
        a(f"v_add_f32 v{vt}, v{u}, v{u+1}")
        for e in range(2, 8): a(f"v_add_f32 v{vt}, v{vt}, v{u+e}")
        allreduce64(vt, vt + 2)
        a(f"v_mul_f32 v{vt}, 0x3b000000, v{vt}")
        for e in range(8): a(f"v_sub_f32 v{u+e}, v{u+e}, v{vt}")
        a(f"v_mul_f32 v{vt+1}, v{u}, v{u}")
        for e in range(1, 8): a(f"v_fmac_f32 v{vt+1}, v{u+e}, v{u+e}")
        allreduce64(vt + 1, vt + 2)
        a(f"v_mul_f32 v{vt+1}, 0x3b000000, v{vt+1}")
        bf16_round(vt); bf16_round(vt + 1)
        a(f"v_add_f32 v{vt+1}, 0x3727c5ac, v{vt+1}")
        bf16_round(vt + 1)
        a(f"v_sqrt_f32 v{vt+1}, v{vt+1}")
        bf16_round(vt + 1)
        a(f"v_rcp_f32 v{vt+1}, v{vt+1}")
    def ln_apply(vx, n, vm, t):
        for e in range(n):
            a(f"v_lshlrev_b32 v{t}, 16, v{vx+e}\nv_and_b32 v{t+1}, 0xffff0000, v{vx+e}")
            a(f"v_sub_f32 v{t}, v{t}, v{vm}\nv_sub_f32 v{t+1}, v{t+1}, v{vm}")
            a(f"v_cvt_pk_bf16_f32 v{vx+e}, v{t}, v{t+1}")
            a(f"v_lshlrev_b32 v{t}, 16, v{vx+e}\nv_and_b32 v{t+1}, 0xffff0000, v{vx+e}")
            a(f"v_mul_f32 v{t}, v{t}, v{vm+1}\nv_mul_f32 v{t+1}, v{t+1}, v{vm+1}")
            a(f"v_cvt_pk_bf16_f32 v{vx+e}, v{t}, v{t+1}")
    def silu(v, t):
        a(f"v_mul_f32 v{t}, 0xbfb8aa3b, v{v}\nv_exp_f32 v{t}, v{t}\nv_add_f32 v{t}, 1.0, v{t}\nv_rcp_f32 v{t}, v{t}\nv_mul_f32 v{v}, v{v}, v{t}")

    vL, vSC = 1, 2
    a(f"""
    s_cmp_ge_u32 s2, 256
    s_cbranch_scc1 L_end
    s_load_dwordx16 s[4:19], s[0:1], 0
    s_load_dwordx8 s[20:27], s[0:1], 64
    """)
    if cfg.stamps: a(f"s_memrealtime s[{STAMP0}:{STAMP0+1}]")
    a(f"""
    v_lshrrev_b32 v3, 6, v0
    v_and_b32 v{vL}, 63, v0
    v_readfirstlane_b32 s{sWAVE}, v3
    v_mov_b32 v{vSC}, {SC}
    s_and_b32 s{sH}, s2, 7
    s_lshl_b32 s{sH}, s{sH}, 2
    s_lshr_b32 s52, s2, 3
    s_and_b32 s52, s52, 3
    s_or_b32 s{sH}, s{sH}, s52
    s_lshr_b32 s{sJ}, s2, 5
    s_mov_b32 s{sPL}, 0x05040100
    s_mov_b32 s{sPH}, 0x07060302
    s_and_b32 s{sA}, s{sWAVE}, 3
    s_waitcnt lgkmcnt(0)
    """)
    if cfg.stamps:
        for k in range(1, 16): a(f"s_mov_b64 s[{STAMP0+2*k}:{STAMP0+2*k+1}], s[{STAMP0}:{STAMP0+1}]")
    srd(sWS, sWSP, 0x10000000)
    a(f"s_cmp_ge_u32 s{sWAVE}, 4\ns_cbranch_scc1 L_att")

    a(f"v_mov_b32 v3, 0")
    a(f"buffer_load_dwordx2 v[4:5], v3, s[{sWS}:{sWS+3}], 0 offen sc1")
    a(f"s_cmp_lg_u32 s{sWAVE}, 0\ns_cbranch_scc1 L_hx")
    vXF, vXS, vWQ, vWK = 8, 12, 64, 128
    srd(sRA, sX, 1024); srd(sRB, sWQ, 0x400000); srd(sRC, sWUK, 0x400000)
    a(f"""
    v_lshlrev_b32 v3, 4, v{vL}
    buffer_load_dwordx4 {V(vXF,4)}, v3, s[{sRA}:{sRA+3}], 0 offen
    v_lshrrev_b32 v6, 4, v{vL}
    v_lshlrev_b32 v7, 5, v6
    s_lshl_b32 s52, s{sJ}, 7
    buffer_load_dwordx4 {V(vXS,4)}, v7, s[{sRA}:{sRA+3}], s52 offen
    buffer_load_dwordx4 {V(vXS+4,4)}, v7, s[{sRA}:{sRA+3}], s52 offen offset:16
    v_lshlrev_b32 v6, 17, v6
    v_and_b32 v7, 15, v{vL}
    v_lshl_add_u32 v6, v7, 4, v6
    s_lshl_b32 s52, s{sJ}, 19
    s_lshl_b32 s53, s{sH}, 8
    s_add_u32 s52, s52, s53
    """)
    for i in range(16):
        a(f"buffer_load_dwordx4 {V(vWQ+4*i,4)}, v6, s[{sRB}:{sRB+3}], s52 offen{cfg.nt_w}")
        a(f"s_add_u32 s52, s52, 8192")
    a(f"s_sub_u32 s52, s52, {16*8192}")
    for i in range(16):
        a(f"buffer_load_dwordx4 {V(vWK+4*i,4)}, v6, s[{sRC}:{sRC+3}], s52 offen{cfg.nt_w}")
        a(f"s_add_u32 s52, s52, 8192")
    a("s_barrier")
    a("s_waitcnt vmcnt(32)")
    a(f"""
    v_readfirstlane_b32 s{sT}, v4
    v_readfirstlane_b32 s{sT+1}, v5
    s_mul_i32 s{sT}, s{sT}, 0x9E3779B1
    s_add_u32 s{sT}, s{sT}, 0x7F4A7C15
    s_mul_i32 s{sT+1}, s{sT+1}, 0x85EBCA6D
    s_add_u32 s{sT+1}, s{sT+1}, 0x2545F491
    """)
    ln_stats(vXF, 20)
    ln_apply(vXS, 8, 20, 22)
    stamp(1)
    vACC = 32
    for e in range(8): a(f"v_mov_b32 v{vACC+e}, 0")
    for k in range(8):
        a(f"s_waitcnt vmcnt({16 + 14 - 2*k})")
        for e in range(4):
            w0 = vWQ + 8*k + e; w1 = w0 + 4
            a(f"v_perm_b32 v{48+2*e}, v{w1}, v{w0}, s{sPL}")
            a(f"v_perm_b32 v{49+2*e}, v{w1}, v{w0}, s{sPH}")
        for e in range(8):
            a(f"v_dot2_f32_bf16 v{vACC+e}, v{48+e}, v{vXS+k}, v{vACC+e}")
    for k in range(4):
        a(f"v_permlane32_swap_b32 v{vACC+k}, v{vACC+k+4}")
    for k in range(4):
        a(f"v_add_f32 v{vACC+k}, v{vACC+k}, v{vACC+k+4}")
    for k in range(2):
        a(f"v_permlane16_swap_b32 v{vACC+k}, v{vACC+k+2}")
    for k in range(2):
        a(f"v_add_f32 v{vACC+k}, v{vACC+k}, v{vACC+k+2}")
    a(f"""
    v_mov_b32 v{vACC+2}, s{sT}
    v_mov_b32 v{vACC+3}, s{sT+1}
    s_lshl_b32 s53, s{sH}, 13
    s_add_u32 s53, s53, {WS_QP}
    s_lshl_b32 s52, s{sJ}, 10
    s_add_u32 s52, s52, s53
    buffer_store_dwordx4 {V(vACC,4)}, v3, s[{sWS}:{sWS+3}], s52 offen sc1
    """)
    stamp(2)
    L = a.label("qp"); D = a.label("qpd")
    a(f"s_mov_b32 s{sCNT}, {cfg.spin}\ns_add_u32 s54, s53, 4096")
    a(f"{L}:")
    for i in range(8):
        a(f"buffer_load_dwordx4 {V(vWQ+4*i,4)}, v3, s[{sWS}:{sWS+3}], s{53 if i < 4 else 54} offen offset:{(i%4)*1024} sc1")
    a("s_waitcnt vmcnt(0)")
    a(f"v_cmp_eq_u64 s[56:57], s[{sT}:{sT+1}], {V(vWQ+2,2)}")
    for i in range(1, 8):
        a(f"v_cmp_eq_u64 vcc, s[{sT}:{sT+1}], {V(vWQ+4*i+2,2)}")
        a(f"s_and_b64 s[56:57], s[56:57], vcc")
    a(f"s_cmp_eq_u64 s[56:57], -1\ns_cbranch_scc1 {D}")
    a(f"s_sub_u32 s{sCNT}, s{sCNT}, 1\ns_cmp_lg_u32 s{sCNT}, 0\ns_cbranch_scc1 {L}")
    a(f"{D}:")
    stamp(3)
    for i in range(1, 8):
        a(f"v_add_f32 v{vWQ}, v{vWQ}, v{vWQ+4*i}\nv_add_f32 v{vWQ+1}, v{vWQ+1}, v{vWQ+4*i+1}")
    vQ = 48
    a(f"""
    v_cvt_pk_bf16_f32 v{vQ}, v{vWQ}, v{vWQ+1}
    v_mov_b32 v{vQ+1}, v{vQ}
    v_permlane16_swap_b32 v{vQ}, v{vQ+1}
    v_mov_b32 v{vQ+2}, v{vQ}
    v_mov_b32 v{vQ+3}, v{vQ+1}
    v_permlane32_swap_b32 v{vQ}, v{vQ+2}
    v_permlane32_swap_b32 v{vQ+1}, v{vQ+3}
    """)
    for e in range(4):
        for i in range(16):
            c = "0" if e == 0 else f"v{vACC+i}"
            a(f"v_dot2_f32_bf16 v{vACC+i}, v{vWK+4*i+e}, v{vQ+e}, {c}")
    vD = 52
    for k in range(8):
        a(f"v_add_f32_dpp v{vD+k}, v{vACC+k}, v{vACC+k} row_ror:8 row_mask:0xf bank_mask:0x3")
    for k in range(8):
        a(f"v_add_f32_dpp v{vD+k}, v{vACC+8+k}, v{vACC+8+k} row_ror:8 row_mask:0xf bank_mask:0xc")
    for k in range(4):
        a(f"v_add_f32_dpp v{vACC+k}, v{vD+k}, v{vD+k} row_half_mirror row_mask:0xf bank_mask:0x5")
    for k in range(4):
        a(f"v_add_f32_dpp v{vACC+k}, v{vD+4+k}, v{vD+4+k} row_half_mirror row_mask:0xf bank_mask:0xa")
    for m in ("quad_perm:[1,0,3,2]", "quad_perm:[2,3,0,1]"):
        for k in range(4):
            a(f"v_add_f32_dpp v{vACC+k}, v{vACC+k}, v{vACC+k} {m} row_mask:0xf bank_mask:0xf")
    import struct, math
    scale = struct.unpack("<I", struct.pack("<f", (128 ** -0.5) * math.log2(math.e)))[0]
    for k in range(4): a(f"v_mul_f32 v{vACC+k}, {hex(scale)}, v{vACC+k}")
    a(f"""
    v_cvt_pk_bf16_f32 v{vACC}, v{vACC}, v{vACC+1}
    v_cvt_pk_bf16_f32 v{vACC+1}, v{vACC+2}, v{vACC+3}
    v_mov_b32 v{vACC+2}, s{sT}
    v_mov_b32 v{vACC+3}, s{sT+1}
    """)
    wait_flags(FL_CLR, 4, vSC)
    a(f"""
    v_lshlrev_b32 v4, 2, v{vL}
    v_and_b32 v5, 3, v{vL}
    s_lshl_b32 s53, s{sH}, 11
    s_add_u32 s53, s53, {WS_QL}
    s_lshl_b32 s52, s{sJ}, 8
    s_add_u32 s52, s52, s53
    v_cmp_eq_u32 vcc, 0, v5
    s_and_saveexec_b64 s[{sEX}:{sEX+1}], vcc
    buffer_store_dwordx4 {V(vACC,4)}, v4, s[{sWS}:{sWS+3}], s52 offen sc1
    s_mov_b64 exec, s[{sEX}:{sEX+1}]
    """)
    set_flag(FL_OWN, 4, vSC)
    stamp(4)
    a("s_branch L_qgather")

    a("L_hx:")
    LN = a.label("nf")
    a(f"""
    s_cmp_lg_u32 s{sWAVE}, 1
    s_cbranch_scc1 {LN}
    v_cmp_eq_u32 vcc, 0, v{vL}
    v_cndmask_b32 v6, 0, 1, vcc
    v_lshl_add_u32 v7, v{vL}, 2, v{vSC}
    ds_write_b32 v7, v6
    s_waitcnt lgkmcnt(0)
    {LN}:
    """)
    a("s_barrier")
    for k in range(4): a(f"v_mov_b32 v{8+k}, -1")
    LC2 = a.label("c2"); LC3 = a.label("c3"); LCD = a.label("cd")
    a(f"s_cmp_eq_u32 s{sWAVE}, 2\ns_cbranch_scc1 {LC2}\ns_cmp_eq_u32 s{sWAVE}, 3\ns_cbranch_scc1 {LC3}")
    a(f"""
    v_and_b32 v6, 31, v{vL}
    v_lshlrev_b32 v6, 10, v6
    s_lshl_b32 s52, s2, 2
    s_add_u32 s52, s52, {WS_LSE}
    buffer_store_dword v8, v6, s[{sWS}:{sWS+3}], s52 offen sc1
    v_lshrrev_b32 v6, 2, v{vL}
    v_lshlrev_b32 v6, 14, v6
    v_and_b32 v7, 3, v{vL}
    v_lshl_add_u32 v6, v7, 4, v6
    s_lshl_b32 s52, s2, 6
    s_add_u32 s53, s52, {WS_FA}
    buffer_store_dwordx4 v[8:11], v6, s[{sWS}:{sWS+3}], s53 offen sc1
    s_add_u32 s53, s53, {16*16384}
    buffer_store_dwordx4 v[8:11], v6, s[{sWS}:{sWS+3}], s53 offen sc1
    s_and_b32 s54, s2, 7
    s_mul_i32 s54, s54, 22
    s_lshr_b32 s55, s2, 3
    s_add_u32 s54, s54, s55
    s_cmp_lt_u32 s55, 22
    s_cselect_b32 s54, s54, 999
    s_cmp_lt_u32 s54, 172
    s_cselect_b32 s54, -1, 0
    v_mov_b32 v12, s54
    v_mov_b32 v13, s54
    v_mov_b32 v14, s54
    v_mov_b32 v15, s54
    s_add_u32 s53, s52, {WS_FF}
    buffer_store_dwordx4 v[12:15], v6, s[{sWS}:{sWS+3}], s53 offen sc1
    s_add_u32 s53, s53, {16*16384}
    buffer_store_dwordx4 v[12:15], v6, s[{sWS}:{sWS+3}], s53 offen sc1
    s_branch {LCD}
    """)
    a(f"{LC2}:\n{LC3}:")
    if cfg.sent_op:
        a(f"""
        v_lshrrev_b32 v6, 3, v{vL}
        v_lshlrev_b32 v6, 15, v6
        v_and_b32 v7, 7, v{vL}
        v_lshl_add_u32 v6, v7, 4, v6
        s_lshl_b32 s52, s2, 7
        s_add_u32 s52, s52, {WS_OP}
        s_sub_u32 s53, s{sWAVE}, 2
        s_lshl_b32 s53, s53, 22
        s_add_u32 s52, s52, s53
        """)
        for i in range(16):
            a(f"buffer_store_dwordx4 v[8:11], v6, s[{sWS}:{sWS+3}], s52 offen sc1")
            a(f"s_add_u32 s52, s52, {8*32768}")
    a(f"{LCD}:")
    a("s_waitcnt vmcnt(0)")
    a(f"v_mov_b32 v6, s{sWAVE}\nv_lshl_add_u32 v6, v6, 2, v{vSC}")
    set_flag(FL_CLR, 7, 6)
    a(f"""
    v_readfirstlane_b32 s{sT}, v4
    v_readfirstlane_b32 s{sT+1}, v5
    s_mul_i32 s{sT}, s{sT}, 0x9E3779B1
    s_add_u32 s{sT}, s{sT}, 0x7F4A7C15
    s_mul_i32 s{sT+1}, s{sT+1}, 0x85EBCA6D
    s_add_u32 s{sT+1}, s{sT+1}, 0x2545F491
    """)
    wait_flags(FL_OWN, 4, vSC, n=1)

    a("L_qgather:")
    vG = 64
    a(f"""
    v_lshlrev_b32 v3, 4, v{vL}
    s_lshl_b32 s53, s{sWAVE}, 14
    s_add_u32 s53, s53, {WS_QL}
    s_add_u32 s54, s53, 4096
    s_add_u32 s55, s53, 8192
    s_add_u32 s58, s53, 12288
    """)
    a(f"""
    v_lshrrev_b32 v8, 4, v{vL}
    v_lshlrev_b32 v8, 12, v8
    v_and_b32 v9, 1, v{vL}
    v_lshl_add_u32 v8, v9, 3, v8
    s_lshl_b32 s52, s{sWAVE}, 10
    s_add_u32 s52, s52, {QIMG}
    v_add_u32 v8, s52, v8
    v_bfe_u32 v9, v{vL}, 1, 3
    s_and_b32 s52, s{sWAVE}, 1
    s_lshl_b32 s52, s52, 1
    v_xor_b32 v9, s52, v9
    """)
    for gi, gx in enumerate((0, 4, 1, 5)):
        a(f"v_xor_b32 v10, {gx}, v9\nv_lshl_add_u32 v{12+gi}, v10, 4, v8")
    L = a.label("ql"); D = a.label("qld")
    a(f"s_mov_b32 s{sCNT}, {cfg.spin}")
    a(f"{L}:")
    for n in range(16):
        so = (53, 54, 55, 58)[n // 4]
        a(f"buffer_load_dwordx4 {V(vG+4*n,4)}, v3, s[{sWS}:{sWS+3}], s{so} offen offset:{(n%4)*1024} sc1")
    a("s_waitcnt vmcnt(0)")
    a(f"v_cmp_eq_u64 s[56:57], s[{sT}:{sT+1}], {V(vG+2,2)}")
    for n in range(1, 16):
        a(f"v_cmp_eq_u64 vcc, s[{sT}:{sT+1}], {V(vG+4*n+2,2)}")
        a(f"s_and_b64 s[56:57], s[56:57], vcc")
    a(f"s_cmp_eq_u64 s[56:57], -1\ns_cbranch_scc1 {D}")
    a(f"s_sleep 2\ns_sub_u32 s{sCNT}, s{sCNT}, 1\ns_cmp_lg_u32 s{sCNT}, 0\ns_cbranch_scc1 {L}")
    a(f"{D}:")
    for n in range(16):
        hh = n >> 1
        a(f"ds_write_b64 v{12 + (hh>>1)}, {V(vG+4*n,2)} offset:{(n&1)*16384 + hh*128}")
    a("s_waitcnt lgkmcnt(0)")
    a(f"v_mov_b32 v6, s{sWAVE}\nv_lshl_add_u32 v6, v6, 2, v{vSC}")
    set_flag(FL_QRDY, 7, 6)
    stamp(5)
    wait_flags(FL_DISS, 4, vSC)
    vFW = 200; vFX = 232
    LF2 = a.label("f2"); LFD = a.label("fd")
    a(f"""
    s_and_b32 s54, s2, 7
    s_mul_i32 s54, s54, 22
    s_lshr_b32 s55, s2, 3
    s_add_u32 s54, s54, s55
    s_cmp_lt_u32 s55, 22
    s_cselect_b32 s100, s54, 999
    s_cmp_ge_u32 s100, 172
    s_cbranch_scc1 {LFD}
    s_cmp_eq_u32 s{sWAVE}, 2
    s_cbranch_scc1 {LF2}
    s_cmp_lg_u32 s{sWAVE}, 1
    s_cbranch_scc1 {LFD}
    """)
    srd(sRA, sX, 1024); srd(sRB, sW1, 512 * 2752)
    a(f"""
    buffer_load_dwordx4 {V(vFX,4)}, v3, s[{sRA}:{sRA+3}], 0 offen
    v_mul_u32_u24 v4, {8*2752}, v{vL}
    s_lshl_b32 s52, s100, 4
    """)
    for i in range(8):
        a(f"buffer_load_dwordx4 {V(vFW+4*i,4)}, v4, s[{sRB}:{sRB+3}], s52 offen")
        a(f"s_add_u32 s52, s52, 2752")
    a(f"s_branch {LFD}")
    a(f"{LF2}:")
    srd(sRB, sW2, 1376 * 1024)
    a(f"v_lshlrev_b32 v4, 3, v{vL}\ns_lshl_b32 s52, s100, 13")
    for f in range(8):
        for k in range(2):
            a(f"buffer_load_dwordx2 {V(vFW+4*f+2*k,2)}, v4, s[{sRB}:{sRB+3}], s52 offen offset:{(f%2)*1024 + k*512}{cfg.nt_w}")
        if f % 2 == 1: a("s_add_u32 s52, s52, 2048")
    a(f"{LFD}:")
    a("s_branch L_late")

    a("L_att:")
    srd(sRA, sCKV, 0x2000000)
    a(f"""
    v_lshrrev_b32 v6, 3, v{vL}
    v_bfe_u32 v7, v6, 1, 1
    v_lshlrev_b32 v7, 2, v7
    v_bfe_u32 v8, v6, 2, 1
    v_or_b32 v7, v7, v8
    v_and_b32 v8, 7, v{vL}
    v_xor_b32 v7, v7, v8
    v_lshlrev_b32 v6, 10, v6
    v_lshl_add_u32 v4, v7, 4, v6
    v_xor_b32 v5, 32, v4
    s_lshl_b32 s52, s2, 17
    s_lshl_b32 s53, s{sA}, 15
    s_add_u32 s52, s52, s53
    s_lshl_b32 s53, s{sA}, 12
    s_mov_b32 s{sRDY}, 0
    """)
    def dma(s, rg):
        a(f"s_add_u32 m0, s53, {s*16384 + rg*1024}")
        a(f"s_add_u32 s54, s52, {rg*8192 + s*128}")
        a(f"buffer_load_dwordx4 v{4 + (rg&1)}, s[{sRA}:{sRA+3}], s54 offen{cfg.nt_c} lds")
    n = 0
    for s in range(7):
        for rg in range(4):
            dma(s, rg); n += 1
            if n == cfg.depth: a("s_barrier")
            if n >= cfg.depth and n < 28:
                K = a.label("sk")
                a(f"s_cmp_lg_u32 s{sRDY}, 0\ns_cbranch_scc1 {K}")
                a(f"ds_read_b128 v[8:11], v{vSC} offset:{FL_QRDY}")
                a(f"s_waitcnt vmcnt({cfg.depth-1}) lgkmcnt(0)")
                a("v_and_b32 v8, v8, v9\nv_and_b32 v10, v10, v11\nv_and_b32 v8, v8, v10")
                a(f"v_readfirstlane_b32 s{sRDY}, v8")
                a(f"{K}:")
    stamp(1)
    wait_flags(FL_QRDY, 8, vSC)
    stamp(2)
    a(f"""
    v_and_b32 v6, 31, v{vL}
    v_bfe_u32 v7, v6, 1, 1
    v_lshlrev_b32 v7, 2, v7
    v_bfe_u32 v8, v6, 2, 2
    v_or_b32 v7, v7, v8
    v_lshrrev_b32 v8, 5, v{vL}
    v_xor_b32 v7, v7, v8
    v_lshlrev_b32 v6, 7, v6
    v_lshl_add_u32 v6, v7, 4, v6
    """)
    vAQ, vA0, vA1 = 12, 16, 20
    for t in range(4):
        a(f"v_xor_b32 v7, {32*t}, v6")
        a(f"v_add_u32 v{vAQ+t}, {QIMG}, v7")
        a(f"v_add_u32 v{vA0+t}, s53, v7")
        a(f"v_add_u32 v{vA1+t}, 0x10000, v{vA0+t}")
    vQF = 128
    for s in range(8):
        for t in range(4):
            a(f"ds_read_b128 {V(vQF+(4*s+t)*4,4)}, v{vAQ+t} offset:{s*4096}")
        if s == 3:
            a("s_waitcnt lgkmcnt(0)")
            a(f"v_mov_b32 v6, s{sA}\nv_lshl_add_u32 v6, v6, 2, v{vSC}")
            set_flag(FL_QCONS, 7, 6)
    wait_flags(FL_QCONS, 8, vSC)
    for rg in range(4): dma(7, rg)
    set_flag(FL_DISS, 7, 6)
    stamp(3)
    vS = 32
    vAF = 64
    def areads(s):
        for t in range(4):
            base = vA0 if s < 4 else vA1
            a(f"ds_read_b128 {V(vAF+(s&1)*16+4*t,4)}, v{base+t} offset:{(s&3)*16384}")
    def mfmas(s):
        for t in range(4):
            c = "0" if (s == 0 and t == 0) else V(vS, 16)
            a(f"v_mfma_f32_32x32x16_bf16 {V(vS,16)}, {V(vAF+(s&1)*16+4*t,4)}, {V(vQF+(4*s+t)*4,4)}, {c}")
    a("s_waitcnt vmcnt(28)")
    areads(0)
    for s in range(7):
        if s < 6:
            a(f"s_waitcnt vmcnt({4*(7-(s+1))})")
            areads(s + 1)
            a("s_waitcnt lgkmcnt(4)")
            mfmas(s)
        else:
            a("s_waitcnt lgkmcnt(0)")
            mfmas(6)
            a("s_waitcnt vmcnt(0)")
            areads(7)
            a("s_waitcnt lgkmcnt(0)")
            mfmas(7)
    stamp(4)
    a(f"v_max3_f32 v8, v{vS}, v{vS+1}, v{vS+2}")
    for r in range(3, 15, 2): a(f"v_max3_f32 v8, v8, v{vS+r}, v{vS+r+1}")
    a(f"v_max_f32 v8, v8, v{vS+15}")
    a(f"v_mov_b32 v9, v8\nv_permlane32_swap_b32 v8, v9\nv_max_f32 v8, v8, v9")
    a(f"""
    v_and_b32 v10, 31, v{vL}
    v_lshl_add_u32 v24, v10, 4, v{vSC}
    s_lshl_b32 s54, s{sA}, 2
    v_add_u32 v25, s54, v24
    ds_write_b32 v25, v8 offset:{SC_MX}
    """)
    a("L_late:")
    vWV = 236; vWO = 128
    srd(sRB, sWUV, 0x400000); srd(sRC, sWO, 0x400000)
    a(f"""
    v_bfe_u32 v26, v{vL}, 4, 1
    v_lshlrev_b32 v26, 5, v26
    v_bfe_u32 v27, v{vL}, 3, 1
    v_lshl_add_u32 v26, v27, 4, v26
    v_lshrrev_b32 v27, 5, v{vL}
    v_lshl_add_u32 v26, v27, 2, v26
    v_and_b32 v27, 3, v{vL}
    v_add_u32 v26, v26, v27
    v_bfe_u32 v27, v{vL}, 2, 1
    v_lshl_add_u32 v26, v27, 3, v26
    v_lshlrev_b32 v26, 13, v26
    s_lshl_b32 s54, s{sJ}, 19
    s_lshl_b32 s55, s{sH}, 8
    s_add_u32 s54, s54, s55
    s_lshl_b32 s55, s{sWAVE}, 5
    s_add_u32 s54, s54, s55
    buffer_load_dwordx4 {V(vWV,4)}, v26, s[{sRB}:{sRB+3}], s54 offen
    buffer_load_dwordx4 {V(vWV+4,4)}, v26, s[{sRB}:{sRB+3}], s54 offen offset:16
    v_lshlrev_b32 v3, 4, v{vL}
    s_lshl_b32 s54, s{sH}, 17
    s_lshl_b32 s55, s{sWAVE}, 14
    s_add_u32 s54, s54, s55
    """)
    for i in range(16):
        a(f"buffer_load_dwordx4 {V(vWO+4*i,4)}, v3, s[{sRC}:{sRC+3}], s54 offen offset:{(i%4)*1024}{cfg.nt_wo}")
        if i % 4 == 3 and i < 15: a("s_add_u32 s54, s54, 4096")
    a(f"""
    v_lshrrev_b32 v4, 5, v{vL}
    v_bfe_u32 v5, v{vL}, 2, 2
    v_lshl_add_u32 v5, v4, 2, v5
    v_lshlrev_b32 v5, 7, v5
    v_and_b32 v6, 1, v{vL}
    v_lshl_add_u32 v5, v6, 3, v5
    s_lshl_b32 s54, s{sWAVE}, 14
    v_add_u32 v5, s54, v5
    v_bfe_u32 v6, v{vL}, 4, 1
    v_lshlrev_b32 v6, 1, v6
    v_bfe_u32 v7, v{vL}, 1, 1
    v_or_b32 v6, v6, v7
    v_bfe_u32 v7, v{vL}, 3, 1
    v_lshl_or_b32 v7, v7, 2, v4
    v_xor_b32 v6, v6, v7
    """)
    for e in range(2):
        for ct in range(2):
            a(f"v_xor_b32 v7, {(4*ct) ^ (2*e)}, v6")
            a(f"v_lshl_add_u32 v{28+2*e+ct}, v7, 4, v5")
    a(f"v_and_b32 v10, 31, v{vL}\nv_lshl_add_u32 v24, v10, 4, v{vSC}")
    a("s_waitcnt lgkmcnt(0)")
    a("s_barrier")
    stamp(6)
    vCF = 64
    def creads():
        for ks in range(8):
            for ct in range(2):
                for e in range(2):
                    a(f"ds_read_b64_tr_b16 {V(vCF+(ct*8+ks)*4+2*e,2)}, v{28+2*e+ct} offset:{(2*ks+e)*1024}")
    LH = a.label("pvh"); LB2 = a.label("b2")
    a(f"s_cmp_lt_u32 s{sWAVE}, 4\ns_cbranch_scc1 {LH}")
    a(f"ds_read_b128 v[8:11], v24 offset:{SC_MX}")
    a("s_waitcnt lgkmcnt(0)")
    a("v_max3_f32 v8, v8, v9, v10\nv_max_f32 v8, v8, v11")
    for r in range(16): a(f"v_sub_f32 v{vS+r}, v{vS+r}, v8")
    for r in range(16): a(f"v_exp_f32 v{vS+r}, v{vS+r}")
    for k in range(8): a(f"v_cvt_pk_bf16_f32 v{48+k}, v{vS+2*k}, v{vS+2*k+1}")
    a(f"""
    s_lshl_b32 s54, s{sA}, 11
    s_add_u32 s54, s54, {PBUF}
    v_add_u32 v9, s54, v3
    ds_write_b128 v9, v[48:51]
    ds_write_b128 v9, v[52:55] offset:1024
    """)
    for k in range(8): a(f"v_add_f32 v{vS+k}, v{vS+k}, v{vS+k+8}")
    for k in range(4): a(f"v_add_f32 v{vS+k}, v{vS+k}, v{vS+k+4}")
    a(f"v_add_f32 v{vS}, v{vS}, v{vS+2}\nv_add_f32 v{vS+1}, v{vS+1}, v{vS+3}\nv_add_f32 v{vS}, v{vS}, v{vS+1}")
    a(f"v_mov_b32 v9, v{vS}\nv_permlane32_swap_b32 v9, v{vS}\nv_add_f32 v{vS}, v{vS}, v9")
    a(f"ds_write_b32 v25, v{vS} offset:{SC_SM}")
    a("s_waitcnt lgkmcnt(0)")
    a("s_barrier")
    creads()
    a(f"s_branch {LB2}")
    a(f"{LH}:")
    creads()
    a("s_barrier")
    a(f"{LB2}:")
    stamp(7)
    vO = 32
    PF = [192, 196, 244, 248]
    a(f"v_add_u32 v9, {PBUF}, v3")
    a(f"ds_read_b128 v[12:15], v24 offset:{SC_SM}")
    a(f"ds_read_b128 v[16:19], v24 offset:{SC_MX}")
    for ks in range(4): a(f"ds_read_b128 {V(PF[ks],4)}, v9 offset:{ks*1024}")
    for ks in range(8):
        a(f"s_waitcnt lgkmcnt({min(3, 7-ks)})")
        for ct in range(2):
            c = "0" if ks == 0 else V(vO+16*ct, 16)
            a(f"v_mfma_f32_32x32x16_bf16 {V(vO+16*ct,16)}, {V(vCF+(ct*8+ks)*4,4)}, {V(PF[ks%4],4)}, {c}")
        if ks + 4 < 8:
            a(f"ds_read_b128 {V(PF[ks%4],4)}, v9 offset:{(ks+4)*1024}")
        if ks == 0:
            a("v_add_f32 v12, v12, v13\nv_add_f32 v14, v14, v15\nv_add_f32 v12, v12, v14")
            a("v_max3_f32 v16, v16, v17, v18\nv_max_f32 v16, v16, v19")
            a("v_log_f32 v13, v12\nv_rcp_f32 v12, v12\nv_add_f32 v13, v13, v16")
            a("v_min_u32 v13, -2, v13")
            a(f"v_and_b32 v14, 31, v{vL}\nv_lshlrev_b32 v14, 10, v14\ns_lshl_b32 s58, s2, 2\ns_add_u32 s58, s58, {WS_LSE}")
            if cfg.sent_op:
                K = a.label("ls")
                a(f"s_cmp_lg_u32 s{sWAVE}, 7\ns_cbranch_scc1 {K}")
                a(f"buffer_store_dword v13, v14, s[{sWS}:{sWS+3}], s58 offen sc1")
                a(f"{K}:")
    a(f"""
    v_and_b32 v4, 31, v{vL}
    v_lshrrev_b32 v5, 5, v{vL}
    v_lshlrev_b32 v5, 2, v5
    v_and_b32 v6, 7, v{vL}
    v_xor_b32 v5, v5, v6
    v_lshlrev_b32 v4, 7, v4
    s_lshl_b32 s54, s{sWAVE}, 14
    v_add_u32 v4, s54, v4
    """)
    for q in range(4):
        a(f"v_xor_b32 v6, {q}, v5\nv_lshl_add_u32 v{20+q}, v6, 4, v4")
    a(f"""
    v_lshrrev_b32 v4, 3, v{vL}
    v_and_b32 v5, 7, v{vL}
    v_xor_b32 v6, v4, v5
    v_lshlrev_b32 v7, 7, v4
    v_lshl_add_u32 v7, v6, 4, v7
    v_add_u32 v7, s54, v7
    v_lshlrev_b32 v4, 18, v4
    v_lshl_add_u32 v4, v5, 4, v4
    s_lshl_b32 s55, s{sWAVE}, 15
    s_lshl_b32 s56, s2, 7
    s_add_u32 s55, s55, s56
    s_add_u32 s55, s55, {WS_OP}
    """)
    for ct in range(2):
        for r in range(16): a(f"v_mul_f32 v{vO+16*ct+r}, v{vO+16*ct+r}, v12")
        for k in range(8):
            a(f"v_cvt_pk_bf16_f32 v{64+8*ct+k}, v{vO+16*ct+2*k}, v{vO+16*ct+2*k+1}")
        if cfg.sent_op:
            for k in range(8): a(f"v_min_u32 v{64+8*ct+k}, -2, v{64+8*ct+k}")
        for u in range(2):
            a(f"ds_write_b128 v{20+2*ct+u}, {V(64+8*ct+4*u,4)}")
    a("s_waitcnt lgkmcnt(0)")
    for i in range(4): a(f"ds_read_b128 {V(80+4*i,4)}, v7 offset:{i*1024}")
    for i in range(4):
        a(f"s_waitcnt lgkmcnt({3-i})")
        a(f"buffer_store_dwordx4 {V(80+4*i,4)}, v4, s[{sWS}:{sWS+3}], s55 offen sc1")
        if i < 3: a(f"s_add_u32 s55, s55, {8*8*32768}")
    stamp(8)
    if not cfg.sent_op:
        a("s_waitcnt vmcnt(0)")
        a("s_barrier")
        K = a.label("ls")
        a(f"s_cmp_lg_u32 s{sWAVE}, 7\ns_cbranch_scc1 {K}")
        a(f"buffer_store_dword v13, v14, s[{sWS}:{sWS+3}], s58 offen sc1")
        a(f"{K}:")
        stamp(9)
    else:
        a("s_waitcnt vmcnt(4)")
    LW2 = a.label("w2"); LWD = a.label("wd")
    a(f"""
    s_cmp_gt_u32 s{sWAVE}, 2
    s_cbranch_scc1 {LWD}
    s_cmp_eq_u32 s{sWAVE}, 0
    s_cbranch_scc1 {LWD}
    s_cmp_ge_u32 s100, 172
    s_cbranch_scc1 {LWD}
    s_cmp_eq_u32 s{sWAVE}, 2
    s_cbranch_scc1 {LW2}
    """)
    ln_stats(vFX, 32)
    ln_apply(vFX, 4, 32, 34)
    for k in range(4):
        for e in range(4):
            w0 = vFW + 8*k + e; w1 = w0 + 4
            a(f"v_perm_b32 v{48+2*e}, v{w1}, v{w0}, s{sPL}")
            a(f"v_perm_b32 v{49+2*e}, v{w1}, v{w0}, s{sPH}")
        for e in range(8):
            c = "0" if k == 0 else f"v{36+e}"
            a(f"v_dot2_f32_bf16 v{36+e}, v{48+e}, v{vFX+k}, {c}")
    for k in range(4): a(f"v_permlane32_swap_b32 v{36+k}, v{40+k}")
    for k in range(4): a(f"v_add_f32 v{36+k}, v{36+k}, v{40+k}")
    for k in range(2): a(f"v_permlane16_swap_b32 v{36+k}, v{38+k}")
    for k in range(2): a(f"v_add_f32 v{36+k}, v{36+k}, v{38+k}")
    for m in ("quad_perm:[1,0,3,2]", "quad_perm:[2,3,0,1]", "row_half_mirror", "row_mirror"):
        for k in range(2):
            a(f"v_add_f32_dpp v{36+k}, v{36+k}, v{36+k} {m} row_mask:0xf bank_mask:0xf")
    for k in range(2):
        bf16_round(36 + k); silu(36 + k, 40)
    a(f"""
    v_cvt_pk_bf16_f32 v36, v36, v37
    v_lshrrev_b32 v37, 4, v{vL}
    v_lshl_add_u32 v37, v37, 2, v{vSC}
    ds_write_b32 v37, v36 offset:{SC_HV}
    s_waitcnt lgkmcnt(0)
    """)
    set_flag(FL_HRDY, 36, vSC)
    a(f"s_branch {LWD}")
    a(f"{LW2}:")
    for k in range(4):
        for e in range(4):
            w0 = vFW + 8*k + e; w1 = w0 + 4
            a(f"v_perm_b32 v{64+8*k+2*e}, v{w1}, v{w0}, s{sPL}")
            a(f"v_perm_b32 v{65+8*k+2*e}, v{w1}, v{w0}, s{sPH}")
    wait_flags(FL_HRDY, 4, vSC, n=1)
    a(f"ds_read_b128 v[4:7], v{vSC} offset:{SC_HV}\ns_waitcnt lgkmcnt(0)")
    for k in range(4):
        for e in range(8):
            c = "0" if k == 0 else f"v{36+e}"
            a(f"v_dot2_f32_bf16 v{36+e}, v{64+8*k+e}, v{4+k}, {c}")
    for e in range(8): a(f"v_min_u32 v{36+e}, -2, v{36+e}")
    a(f"""
    v_lshrrev_b32 v6, 2, v{vL}
    v_lshlrev_b32 v6, 14, v6
    v_and_b32 v7, 3, v{vL}
    v_lshl_add_u32 v6, v7, 4, v6
    s_lshl_b32 s52, s2, 6
    s_add_u32 s53, s52, {WS_FF}
    buffer_store_dwordx4 v[36:39], v6, s[{sWS}:{sWS+3}], s53 offen sc1
    s_add_u32 s53, s53, {16*16384}
    buffer_store_dwordx4 v[40:43], v6, s[{sWS}:{sWS+3}], s53 offen sc1
    """)
    a(f"{LWD}:")
    vWP = 64
    for k in range(8):
        for e in range(4):
            w0 = vWO + 8*k + e; w1 = w0 + 4
            a(f"v_perm_b32 v{vWP+8*k+2*e}, v{w1}, v{w0}, s{sPL}")
            a(f"v_perm_b32 v{vWP+8*k+2*e+1}, v{w1}, v{w0}, s{sPH}")
    vUV = 128
    for e in range(8):
        a(f"v_lshlrev_b32 v{vUV+2*e}, 16, v{vWV+e}\nv_and_b32 v{vUV+2*e+1}, 0xffff0000, v{vWV+e}")
    a(f"""
    v_lshrrev_b32 v4, 3, v{vL}
    v_lshlrev_b32 v5, 4, v4
    v_lshlrev_b32 v4, 9, v4
    v_and_b32 v6, 7, v{vL}
    v_lshl_add_u32 v4, v6, 4, v4
    s_lshl_b32 s52, s{sH}, 10
    s_add_u32 s52, s52, {WS_LSE}
    s_lshl_b32 s53, s{sWAVE}, 7
    s_add_u32 s53, s53, s52
    s_lshl_b32 s54, s{sH}, 3
    s_add_u32 s54, s54, s{sJ}
    s_lshl_b32 s54, s54, 15
    s_lshl_b32 s55, s{sWAVE}, 12
    s_add_u32 s54, s54, s55
    s_add_u32 s54, s54, {WS_OP}
    """)
    L = a.label("lse"); D = a.label("lsed")
    a(f"s_mov_b32 s{sCNT}, {cfg.spin}")
    a(f"{L}:")
    a(f"buffer_load_dwordx4 v[8:11], v3, s[{sWS}:{sWS+3}], s52 offen sc1")
    a(f"buffer_load_dwordx4 v[12:15], v5, s[{sWS}:{sWS+3}], s53 offen sc1")
    a("s_waitcnt vmcnt(0)")
    a("v_max3_u32 v16, v8, v9, v10\nv_max3_u32 v16, v16, v11, v12\nv_max3_u32 v16, v16, v13, v14\nv_max_u32 v16, v16, v15")
    a(f"v_cmp_eq_u32 vcc, -1, v16\ns_cbranch_vccz {D}")
    a(f"s_sleep 1\ns_sub_u32 s{sCNT}, s{sCNT}, 1\ns_cmp_lg_u32 s{sCNT}, 0\ns_cbranch_scc1 {L}")
    a(f"{D}:")
    stamp(10)
    vM = 144
    def oloads():
        for i in range(4):
            a(f"buffer_load_dwordx4 {V(vM+4*i,4)}, v4, s[{sWS}:{sWS+3}], s54 offen offset:{i*128} sc1")
    oloads()
    a("v_max3_f32 v16, v8, v9, v10\nv_max_f32 v16, v16, v11")
    allreduce64(16, 17, "v_max_f32")
    for k in range(8): a(f"v_sub_f32 v{8+k}, v{8+k}, v16")
    for k in range(8): a(f"v_exp_f32 v{8+k}, v{8+k}")
    a("v_add_f32 v8, v8, v9\nv_add_f32 v10, v10, v11\nv_add_f32 v8, v8, v10")
    allreduce64(8, 17)
    a("v_rcp_f32 v8, v8")
    for k in range(4): a(f"v_mul_f32 v{12+k}, v{12+k}, v8")
    if cfg.sent_op:
        L = a.label("op"); D = a.label("opd")
        a(f"s_mov_b32 s{sCNT}, {cfg.spin}")
        a(f"{L}:")
        a("s_waitcnt vmcnt(0)")
        a(f"v_max3_u32 v16, v{vM}, v{vM+1}, v{vM+2}")
        for k in range(3, 15, 2): a(f"v_max3_u32 v16, v16, v{vM+k}, v{vM+k+1}")
        a(f"v_max_u32 v16, v16, v{vM+15}")
        a(f"v_cmp_eq_u32 vcc, -1, v16\ns_cbranch_vccz {D}")
        oloads()
        a(f"s_sub_u32 s{sCNT}, s{sCNT}, 1\ns_cmp_lg_u32 s{sCNT}, 0\ns_cbranch_scc1 {L}")
        a("s_waitcnt vmcnt(0)")
        a(f"{D}:")
    vB = 32
    for i in range(4):
        if not cfg.sent_op: a(f"s_waitcnt vmcnt({3-i})")
        for e in range(4):
            a(f"v_lshlrev_b32 v{40+2*e}, 16, v{vM+4*i+e}\nv_and_b32 v{41+2*e}, 0xffff0000, v{vM+4*i+e}")
        for e in range(8):
            if i == 0: a(f"v_mul_f32 v{vB+e}, v{40+e}, v12")
            else: a(f"v_fmac_f32 v{vB+e}, v{40+e}, v{12+i}")
    stamp(11)
    for k in range(4): a(f"v_permlane32_swap_b32 v{vB+k}, v{vB+k+4}")
    for k in range(4): a(f"v_add_f32 v{vB+k}, v{vB+k}, v{vB+k+4}")
    for k in range(2): a(f"v_permlane16_swap_b32 v{vB+k}, v{vB+k+2}")
    for k in range(2): a(f"v_add_f32 v{vB+k}, v{vB+k}, v{vB+k+2}")
    for k in range(2): a(f"v_add_f32_dpp v{vB+k}, v{vB+k}, v{vB+k} row_ror:8 row_mask:0xf bank_mask:0xf")
    a(f"""
    v_and_b32 v6, 7, v{vL}
    v_lshlrev_b32 v6, 5, v6
    v_lshrrev_b32 v7, 4, v{vL}
    v_lshl_add_u32 v6, v7, 3, v6
    s_lshl_b32 s52, s{sWAVE}, 8
    s_add_u32 s52, s52, {SC + SC_R1}
    v_add_u32 v6, s52, v6
    ds_write_b64 v6, {V(vB,2)}
    v_lshl_add_u32 v7, v{vL}, 2, v{vSC}
    s_waitcnt lgkmcnt(0)
    s_barrier
    """)
    for i in range(8): a(f"ds_read_b32 v{8+i}, v7 offset:{SC_R1 + i*256}")
    a("s_waitcnt lgkmcnt(0)")
    for k in range(4): a(f"v_add_f32 v{8+k}, v{8+k}, v{12+k}")
    a("v_add_f32 v8, v8, v9\nv_add_f32 v10, v10, v11\nv_add_f32 v8, v8, v10")
    for e in range(16): a(f"v_mul_f32 v{vUV+e}, v{vUV+e}, v8")
    for k in range(8): a(f"v_permlane32_swap_b32 v{vUV+k}, v{vUV+k+8}")
    for k in range(8): a(f"v_add_f32 v{vUV+k}, v{vUV+k}, v{vUV+k+8}")
    for k in range(4): a(f"v_permlane16_swap_b32 v{vUV+k}, v{vUV+k+4}")
    for k in range(4): a(f"v_add_f32 v{vUV+k}, v{vUV+k}, v{vUV+k+4}")
    for k in range(2):
        a(f"v_add_f32_dpp v{8+k}, v{vUV+k}, v{vUV+k} row_ror:8 row_mask:0xf bank_mask:0x3")
    for k in range(2):
        a(f"v_add_f32_dpp v{8+k}, v{vUV+2+k}, v{vUV+2+k} row_ror:8 row_mask:0xf bank_mask:0xc")
    for m in ("quad_perm:[1,0,3,2]", "quad_perm:[2,3,0,1]", "row_half_mirror"):
        for k in range(2):
            a(f"v_add_f32_dpp v{8+k}, v{8+k}, v{8+k} {m} row_mask:0xf bank_mask:0xf")
    a("v_cvt_pk_bf16_f32 v8, v8, v9")
    for k in range(8): a(f"v_readlane_b32 s{52+k}, v8, {8*k}")
    for k in range(8):
        for e in range(8):
            c = "0" if k == 0 else f"v{vB+e}"
            a(f"v_dot2_f32_bf16 v{vB+e}, v{vWP+8*k+e}, s{52+k}, {c}")
    a(f"""
    v_lshlrev_b32 v6, 5, v{vL}
    s_lshl_b32 s52, s{sWAVE}, 11
    v_add_u32 v6, s52, v6
    ds_write_b128 v6, {V(vB,4)} offset:{R2}
    ds_write_b128 v6, {V(vB+4,4)} offset:{R2+16}
    v_and_b32 v7, 15, v{vL}
    v_lshlrev_b32 v7, 4, v7
    s_lshl_b32 s52, s{sWAVE}, 8
    v_add_u32 v6, s52, v7
    v_lshrrev_b32 v5, 4, v{vL}
    v_lshl_add_u32 v6, v5, 12, v6
    s_waitcnt lgkmcnt(0)
    s_barrier
    """)
    a(f"ds_read_b128 v[8:11], v6 offset:{R2}\nds_read_b128 v[12:15], v6 offset:{R2+2048}")
    a(f"""
    v_bfe_u32 v5, v{vL}, 2, 2
    v_lshlrev_b32 v5, 14, v5
    v_and_b32 v7, 3, v{vL}
    v_lshl_add_u32 v5, v7, 4, v5
    s_lshl_b32 s52, s{sWAVE}, 16
    s_lshl_b32 s53, s2, 6
    s_add_u32 s52, s52, s53
    s_add_u32 s52, s52, {WS_FA}
    s_waitcnt lgkmcnt(0)
    """)
    for k in range(4): a(f"v_add_f32 v{8+k}, v{8+k}, v{12+k}")
    for sw in ("v_permlane32_swap_b32", "v_permlane16_swap_b32"):
        for k in range(4): a(f"v_mov_b32 v{12+k}, v{8+k}")
        for k in range(4): a(f"{sw} v{8+k}, v{12+k}")
        for k in range(4): a(f"v_add_f32 v{8+k}, v{8+k}, v{12+k}")
    for k in range(4): a(f"v_min_u32 v{8+k}, -2, v{8+k}")
    a(f"""
    s_mov_b64 exec, 0xffff
    buffer_store_dwordx4 v[8:11], v5, s[{sWS}:{sWS+3}], s52 offen sc1
    s_mov_b64 exec, -1
    """)
    stamp(12)
    a(f"s_cmp_ge_u32 s2, 32\ns_cbranch_scc1 L_fin")
    srd(sRA, sX, 1024); srd(sRB, sOUT, 1024)
    a(f"""
    s_lshl_b32 s52, s2, 14
    s_lshl_b32 s53, s{sWAVE}, 11
    s_add_u32 s52, s52, s53
    s_add_u32 s53, s52, {WS_FF}
    s_add_u32 s52, s52, {WS_FA}
    v_lshlrev_b32 v4, 1, v{vL}
    s_lshl_b32 s54, s2, 5
    buffer_load_ushort v30, v4, s[{sRA}:{sRA+3}], s54 offen
    """)
    def fin_gather(soff, ldsoff):
        L = a.label("fg"); D = a.label("fgd")
        a(f"s_mov_b32 s{sCNT}, {cfg.spin}")
        a(f"{L}:")
        a(f"buffer_load_dwordx4 v[8:11], v3, s[{sWS}:{sWS+3}], s{soff} offen sc1")
        a(f"buffer_load_dwordx4 v[12:15], v3, s[{sWS}:{sWS+3}], s{soff} offen offset:1024 sc1")
        a("s_waitcnt vmcnt(0)")
        a("v_max3_u32 v16, v8, v9, v10\nv_max3_u32 v16, v16, v11, v12\nv_max3_u32 v16, v16, v13, v14\nv_max_u32 v16, v16, v15")
        a(f"v_cmp_eq_u32 vcc, -1, v16\ns_cbranch_vccz {D}")
        a(f"s_sub_u32 s{sCNT}, s{sCNT}, 1\ns_cmp_lg_u32 s{sCNT}, 0\ns_cbranch_scc1 {L}")
        a(f"{D}:")
        for k in range(4): a(f"v_add_f32 v{8+k}, v{8+k}, v{12+k}")
        for k in range(2): a(f"v_permlane32_swap_b32 v{8+k}, v{10+k}")
        for k in range(2): a(f"v_add_f32 v{8+k}, v{8+k}, v{10+k}")
        a("v_permlane16_swap_b32 v8, v9\nv_add_f32 v8, v8, v9")
        a("v_add_f32_dpp v8, v8, v8 row_ror:8 row_mask:0xf bank_mask:0xf")
        a("v_add_f32_dpp v8, v8, v8 row_ror:4 row_mask:0xf bank_mask:0xf")
        a(f"ds_write_b32 v20, v8 offset:{ldsoff}")
    a(f"""
    v_and_b32 v20, 3, v{vL}
    v_lshlrev_b32 v20, 4, v20
    v_lshrrev_b32 v21, 4, v{vL}
    v_lshl_add_u32 v20, v21, 2, v20
    s_lshl_b32 s55, s{sWAVE}, 6
    s_add_u32 s55, s55, {SC}
    v_add_u32 v20, s55, v20
    """)
    fin_gather(53, SC_R4)
    fin_gather(52, SC_R3)
    a("s_waitcnt lgkmcnt(0)\ns_barrier")
    stamp(13)
    a(f"s_cmp_lg_u32 s{sWAVE}, 0\ns_cbranch_scc1 L_fin")
    a(f"""
    v_lshl_add_u32 v7, v{vL}, 2, v{vSC}
    ds_read_b32 v8, v7 offset:{SC_R3}
    ds_read_b32 v9, v7 offset:{SC_R3+256}
    ds_read_b32 v10, v7 offset:{SC_R4}
    ds_read_b32 v11, v7 offset:{SC_R4+256}
    s_waitcnt lgkmcnt(0)
    v_add_f32 v8, v8, v9
    v_add_f32 v10, v10, v11
    """)
    for sw in ("v_permlane32_swap_b32", "v_permlane16_swap_b32"):
        a(f"v_mov_b32 v9, v8\nv_mov_b32 v11, v10\n{sw} v8, v9\n{sw} v10, v11\nv_add_f32 v8, v8, v9\nv_add_f32 v10, v10, v11")
    bf16_round(8); bf16_round(10); silu(10, 12); bf16_round(10)
    a("v_mul_f32 v8, v8, v10")
    bf16_round(8)
    a(f"""
    v_lshlrev_b32 v30, 16, v30
    v_add_f32 v8, v8, v30
    v_cvt_pk_bf16_f32 v8, v8, v8
    s_mov_b64 exec, 0xffff
    buffer_store_short v8, v4, s[{sRB}:{sRB+3}], s54 offen
    s_cmp_lg_u32 s2, 0
    s_cbranch_scc1 L_fin0
    s_mov_b64 exec, 1
    v_mov_b32 v8, s{sT}
    v_mov_b32 v9, s{sT+1}
    v_mov_b32 v10, 0
    buffer_store_dwordx2 v[8:9], v10, s[{sWS}:{sWS+3}], 0 offen sc1
    L_fin0:
    s_mov_b64 exec, -1
    """)
    a("L_fin:")
    if cfg.stamps:
        a("s_waitcnt vmcnt(0)")
        stamp(14)
        a(f"""
        s_cmp_lg_u32 s{sA}, 0
        s_cbranch_scc1 L_end
        s_lshl_b32 s52, s2, 8
        s_lshl_b32 s53, s{sWAVE}, 5
        s_add_u32 s52, s52, s53
        s_add_u32 s52, s52, {WS_STAMP}
        s_mov_b64 exec, 1
        v_mov_b32 v10, 0
        """)
        for k in range(16):
            a(f"v_mov_b32 v8, s{STAMP0+2*k}\nv_mov_b32 v9, s{STAMP0+2*k+1}")
            a(f"buffer_store_dwordx2 v[8:9], v10, s[{sWS}:{sWS+3}], s52 offen offset:{8*k}")
    a("L_end:\ns_endpgm")
    body = "\n".join(hazard.pad(a.lines)) + "\n"
    return wrap(body, 256, 512, LDS_BYTES, vgpr=256, sgpr=102)

if __name__ == "__main__":
    ap = argparse.ArgumentParser()
    ap.add_argument("-o", default="k.s")
    ap.add_argument("--set", nargs="*", default=[])
    args = ap.parse_args()
    cfg = Cfg()
    for kv in args.set:
        k, v = kv.split("=", 1)
        old = getattr(cfg, k)
        if isinstance(old, bool): v = v in ("1", "True", "true")
        elif isinstance(old, int): v = int(v, 0)
        else: v = (" " + v.replace("_", " ")) if v else ""
        setattr(cfg, k, v)
    open(args.o, "w").write(gen(cfg))
```

```python
import sys, argparse, struct, math
from asmlib import *
import hazard

WS_QPA = 0x10000
WS_QPB = 0x50000
WS_QL = 0x90000
WS_LSE = 0xA0000
WS_CXA = 0xC0000
WS_CXB = 0x100000
WS_FA = 0x200000
WS_FF = 0x300000
WS_OP = 0x1000000
WS_STAMP = 0x8000000
QIMG = 112 * 1024
PBUF = 128 * 1024
SC = 144 * 1024
FL_OWN, FL_QRDY, FL_QCONS, FL_DISS, FL_HRDY = 16, 32, 48, 64, 80
SC_MX = 256; SC_SM = 768; SC_HV = 1280; SC_ST = 1344; SC_R1 = 2048; SC_R3 = 4096; SC_R4 = 4608
LDS_BYTES = 160 * 1024

sX, sCKV, sWQ, sWUK, sWUV, sWO, sW1, sW2, sOUT, sWSP = 4, 6, 8, 10, 12, 14, 18, 20, 22, 26
sWAVE, sH, sJ, sA = 28, 29, 30, 31
sT = 32; sEX = 34; sWS = 36
sRA, sRB, sRC = 40, 44, 48
sP = 3
sPL, sPH = 96, 97
sCNT, sRDY, sFI, sTMP = 98, 99, 100, 101
STAMP0 = 64

class Cfg:
    depth = 5
    nt_c = " nt"; nt_w = " nt"; nt_l = ""
    sent_op = False
    stamps = False
    spin = 20000
    prefetch = True
    local_tries = 6

def gen(cfg):
    a = Asm()
    def stamp(k):
        if cfg.stamps:
            a(f"s_memrealtime s[{STAMP0+2*k}:{STAMP0+2*k+1}]")
            a("s_waitcnt lgkmcnt(0)")
    def srd(d, base, size):
        a(f"s_mov_b32 s{d}, s{base}\ns_mov_b32 s{d+1}, s{base+1}\ns_mov_b32 s{d+2}, {hex(size)}\ns_mov_b32 s{d+3}, 0x20000")
    def V(b, n=1):
        return f"v{b}" if n == 1 else f"v[{b}:{b+n-1}]"
    WS = f"s[{sWS}:{sWS+3}]"; RA = f"s[{sRA}:{sRA+3}]"; RB = f"s[{sRB}:{sRB+3}]"; RC = f"s[{sRC}:{sRC+3}]"
    TAG = f"s[{sT}:{sT+1}]"
    DPPALL = "row_mask:0xf bank_mask:0xf"
    def set_flag(off, vtmp, vaddr):
        a(f"v_mov_b32 v{vtmp}, 1")
        a(f"ds_write_b32 v{vaddr}, v{vtmp} offset:{off}")
    def wait_flags(off, vt, vsc, n=4, first=False):
        L = a.label("wf"); D = a.label("wfd")
        a(f"s_mov_b32 s{sCNT}, {cfg.spin*8}")
        a(f"{L}:")
        if n == 4:
            a(f"ds_read_b128 v[{vt}:{vt+3}], v{vsc} offset:{off}")
            a("s_waitcnt lgkmcnt(0)")
            if not first:
                a(f"v_and_b32 v{vt}, v{vt}, v{vt+1}\nv_and_b32 v{vt+2}, v{vt+2}, v{vt+3}\nv_and_b32 v{vt}, v{vt}, v{vt+2}")
        else:
            a(f"ds_read_b32 v{vt}, v{vsc} offset:{off}")
            a("s_waitcnt lgkmcnt(0)")
        a(f"v_readfirstlane_b32 s{sTMP}, v{vt}")
        a(f"s_cmp_lg_u32 s{sTMP}, 0\ns_cbranch_scc1 {D}")
        a(f"s_sleep 1\ns_sub_u32 s{sCNT}, s{sCNT}, 1\ns_cmp_lg_u32 s{sCNT}, 0\ns_cbranch_scc1 {L}")
        a(f"{D}:")
    def allreduce64(v, t, op="v_add_f32"):
        for m in ("quad_perm:[1,0,3,2]", "quad_perm:[2,3,0,1]", "row_half_mirror", "row_mirror"):
            a(f"{op}_dpp v{v}, v{v}, v{v} {m} {DPPALL}")
        a(f"v_mov_b32 v{t}, v{v}\nv_permlane16_swap_b32 v{t}, v{v}\n{op} v{v}, v{v}, v{t}")
        a(f"v_mov_b32 v{t}, v{v}\nv_permlane32_swap_b32 v{t}, v{v}\n{op} v{v}, v{v}, v{t}")
    def bf16_round(v):
        a(f"v_cvt_pk_bf16_f32 v{v}, v{v}, v{v}\nv_and_b32 v{v}, 0xffff0000, v{v}")
    def ln_stats(vx, vt):
        u = vt + 4
        for e in range(4):
            a(f"v_lshlrev_b32 v{u+2*e}, 16, v{vx+e}\nv_and_b32 v{u+2*e+1}, 0xffff0000, v{vx+e}")
        a(f"v_add_f32 v{vt}, v{u}, v{u+1}")
        for e in range(2, 8): a(f"v_add_f32 v{vt}, v{vt}, v{u+e}")
        allreduce64(vt, vt + 2)
        a(f"v_mul_f32 v{vt}, 0x3b000000, v{vt}")
        for e in range(8): a(f"v_sub_f32 v{u+e}, v{u+e}, v{vt}")
        a(f"v_mul_f32 v{vt+1}, v{u}, v{u}")
        for e in range(1, 8): a(f"v_fmac_f32 v{vt+1}, v{u+e}, v{u+e}")
        allreduce64(vt + 1, vt + 2)
        a(f"v_mul_f32 v{vt+1}, 0x3b000000, v{vt+1}")
        bf16_round(vt); bf16_round(vt + 1)
        a(f"v_add_f32 v{vt+1}, 0x3727c5ac, v{vt+1}")
        bf16_round(vt + 1)
        a(f"v_sqrt_f32 v{vt+1}, v{vt+1}")
        bf16_round(vt + 1)
        a(f"v_rcp_f32 v{vt+1}, v{vt+1}")
    def ln_apply(vx, n, vm, t):
        for e in range(n):
            a(f"v_lshlrev_b32 v{t}, 16, v{vx+e}\nv_and_b32 v{t+1}, 0xffff0000, v{vx+e}")
            a(f"v_sub_f32 v{t}, v{t}, v{vm}\nv_sub_f32 v{t+1}, v{t+1}, v{vm}")
            a(f"v_cvt_pk_bf16_f32 v{vx+e}, v{t}, v{t+1}")
            a(f"v_lshlrev_b32 v{t}, 16, v{vx+e}\nv_and_b32 v{t+1}, 0xffff0000, v{vx+e}")
            a(f"v_mul_f32 v{t}, v{t}, v{vm+1}\nv_mul_f32 v{t+1}, v{t+1}, v{vm+1}")
            a(f"v_cvt_pk_bf16_f32 v{vx+e}, v{t}, v{t+1}")
    def silu(v, t):
        a(f"v_mul_f32 v{t}, 0xbfb8aa3b, v{v}\nv_exp_f32 v{t}, v{t}\nv_add_f32 v{t}, 1.0, v{t}\nv_rcp_f32 v{t}, v{t}\nv_mul_f32 v{v}, v{v}, v{t}")
    def pair_rows(src, dst, k):
        for e in range(4):
            w0 = src + 8*k + e; w1 = w0 + 4
            a(f"v_perm_b32 v{dst+2*e}, v{w1}, v{w0}, s{sPL}")
            a(f"v_perm_b32 v{dst+2*e+1}, v{w1}, v{w0}, s{sPH}")
    def rs8to2(b):
        for k in range(4): a(f"v_permlane32_swap_b32 v{b+k}, v{b+k+4}")
        for k in range(4): a(f"v_add_f32 v{b+k}, v{b+k}, v{b+k+4}")
        for k in range(2): a(f"v_permlane16_swap_b32 v{b+k}, v{b+k+2}")
        for k in range(2): a(f"v_add_f32 v{b+k}, v{b+k}, v{b+k+2}")
    def msg_addr(vd, vt, sidx):
        a(f"""
        v_lshrrev_b32 v{vd}, 3, v{vL}
        v_lshlrev_b32 v{vt}, 2, v{vd}
        v_xor_b32 v{vt}, s{sidx}, v{vt}
        v_lshlrev_b32 v{vd}, 15, v{vd}
        v_lshl_add_u32 v{vd}, v{vt}, 7, v{vd}
        v_and_b32 v{vt}, 7, v{vL}
        v_lshl_add_u32 v{vd}, v{vt}, 4, v{vd}
        """)
    QA = lambda b, e: b + 4*(e >> 1) + (e & 1)
    def fill_tags(b, n):
        for q in range(n): a(f"v_mov_b32 v{b+4*q+2}, s{sT}\nv_mov_b32 v{b+4*q+3}, s{sT+1}")

    vL, vSC, vL16 = 1, 2, 3
    a("L_start:")
    a(f"""
    s_cmp_ge_u32 s2, 256
    s_cbranch_scc1 L_end
    s_load_dwordx16 s[4:19], s[0:1], 0
    s_load_dwordx8 s[20:27], s[0:1], 64
    """)
    if cfg.stamps: a(f"s_memrealtime s[{STAMP0}:{STAMP0+1}]")
    a(f"""
    v_lshrrev_b32 v4, 6, v0
    v_and_b32 v{vL}, 63, v0
    v_readfirstlane_b32 s{sWAVE}, v4
    v_lshlrev_b32 v{vL16}, 4, v{vL}
    s_lshr_b32 s52, s2, 3
    """)
    if cfg.prefetch:
        K = a.label("pf")
        a(f"""
        s_cmp_lg_u32 s{sWAVE}, 1
        s_cbranch_scc1 {K}
        s_getpc_b64 s[60:61]
        L_pc:
        s_sub_u32 s60, s60, L_pc-L_start
        s_subb_u32 s61, s61, 0
        s_min_u32 s53, s52, (L_codeend-L_start)/1024
        s_lshl_b32 s53, s53, 10
        v_add_u32 v4, s53, v{vL16}
        global_load_dwordx4 v[240:243], v4, s[60:61]
        {K}:
        """)
    a(f"""
    v_mov_b32 v{vSC}, {SC}
    s_and_b32 s53, s2, 7
    s_lshl_b32 s{sH}, s53, 2
    s_lshr_b32 s54, s2, 6
    s_or_b32 s{sH}, s{sH}, s54
    s_and_b32 s{sJ}, s52, 7
    s_mul_i32 s{sFI}, s53, 22
    s_add_u32 s{sFI}, s{sFI}, s52
    s_cmp_lt_u32 s52, 22
    s_cselect_b32 s{sFI}, s{sFI}, 999
    s_lshl_b32 s53, s53, 5
    s_or_b32 s{sP}, s53, s52
    s_mov_b32 s{sPL}, 0x05040100
    s_mov_b32 s{sPH}, 0x07060302
    s_and_b32 s{sA}, s{sWAVE}, 3
    s_waitcnt lgkmcnt(0)
    """)
    if cfg.stamps:
        for k in range(1, 16): a(f"s_mov_b64 s[{STAMP0+2*k}:{STAMP0+2*k+1}], s[{STAMP0}:{STAMP0+1}]")
    srd(sWS, sWSP, 0x10000000)
    a(f"s_cmp_ge_u32 s{sWAVE}, 4\ns_cbranch_scc1 L_att")
    a(f"s_cmp_lg_u32 s{sWAVE}, 0\ns_cbranch_scc1 L_hx")

    vXF, vXS, vWQ, vWK = 8, 12, 64, 128
    srd(sRA, sX, 1024); srd(sRB, sWQ, 0x400000); srd(sRC, sWUK, 0x400000)
    a(f"""
    s_setprio 3
    buffer_load_dwordx4 {V(vXF,4)}, v{vL16}, {RA}, 0 offen
    v_lshrrev_b32 v6, 4, v{vL}
    v_and_b32 v7, 7, v{vL}
    v_lshlrev_b32 v7, 2, v7
    v_lshl_add_u32 v7, v6, 5, v7
    s_lshl_b32 s52, s{sJ}, 7
    buffer_load_dword v{vXS}, v7, {RA}, s52 offen
    v_lshlrev_b32 v6, 17, v6
    v_and_b32 v7, 15, v{vL}
    v_lshl_add_u32 v6, v7, 4, v6
    s_lshl_b32 s52, s{sJ}, 19
    s_lshl_b32 s53, s{sH}, 8
    s_add_u32 s52, s52, s53
    """)
    for i in range(16):
        a(f"buffer_load_dwordx4 {V(vWQ+4*i,4)}, v6, {RB}, s52 offen{cfg.nt_w}")
        a(f"s_add_u32 s52, s52, 8192")
    a(f"v_mov_b32 v7, 0")
    a(f"buffer_load_dwordx2 v[4:5], v7, {WS}, 0 offen sc1")
    a(f"s_sub_u32 s52, s52, {16*8192}")
    for i in range(16):
        a(f"buffer_load_dwordx4 {V(vWK+4*i,4)}, v6, {RC}, s52 offen{cfg.nt_w}")
        a(f"s_add_u32 s52, s52, 8192")
    a("s_barrier")
    a("s_waitcnt vmcnt(33)")
    ln_stats(vXF, 20)
    ln_apply(vXS, 1, 20, 22)
    stamp(1)
    vACC = 32
    for e in range(8): a(f"v_mov_b32 v{vACC+e}, 0")
    for k in range(8):
        a(f"s_waitcnt vmcnt({17 + 14 - 2*k})")
        pair_rows(vWQ, 48, k)
        for e in range(8):
            a(f"v_dot2c_f32_bf16_dpp v{vACC+e}, v{vXS}, v{48+e} row_newbcast:{k} {DPPALL}")
    rs8to2(vACC)
    a("s_waitcnt vmcnt(16)")
    a(f"""
    v_readfirstlane_b32 s{sT}, v4
    v_readfirstlane_b32 s{sT+1}, v5
    s_mul_i32 s{sT}, s{sT}, 0x9E3779B1
    s_add_u32 s{sT}, s{sT}, 0x7F4A7C15
    s_mul_i32 s{sT+1}, s{sT+1}, 0x85EBCA6D
    s_add_u32 s{sT+1}, s{sT+1}, 0x2545F491
    v_mov_b32 v{vACC+2}, s{sT}
    v_mov_b32 v{vACC+3}, s{sT+1}
    s_lshl_b32 s53, s{sH}, 13
    s_add_u32 s53, s53, {WS_QPA}
    s_lshl_b32 s52, s{sJ}, 10
    s_add_u32 s52, s52, s53
    buffer_store_dwordx4 {V(vACC,4)}, v{vL16}, {WS}, s52 offen
    s_add_u32 s54, s53, 4096
    s_add_u32 s52, s52, {WS_QPB - WS_QPA}
    """)
    stamp(2)
    def qp_loads():
        for i in range(8):
            a(f"buffer_load_dwordx4 {V(vWQ+4*i,4)}, v{vL16}, {WS}, s{53 if i < 4 else 54} offen offset:{(i%4)*1024} sc1")
    L = a.label("qp"); D = a.label("qpd"); C = a.label("qpc"); N = a.label("qpn")
    qp_loads()
    a(f"buffer_store_dwordx4 {V(vACC,4)}, v{vL16}, {WS}, s52 offen sc1")
    a(f"s_mov_b32 s{sCNT}, 0\ns_waitcnt vmcnt(1)\ns_branch {C}")
    a(f"{L}:")
    qp_loads()
    a("s_waitcnt vmcnt(0)")
    a(f"{C}:")
    a(f"v_cmp_eq_u64 s[56:57], {TAG}, {V(vWQ+2,2)}")
    for i in range(1, 8):
        a(f"v_cmp_eq_u64 vcc, {TAG}, {V(vWQ+4*i+2,2)}")
        a(f"s_and_b64 s[56:57], s[56:57], vcc")
    a(f"s_cmp_eq_u64 s[56:57], -1\ns_cbranch_scc1 {D}")
    a(f"""
    s_add_u32 s{sCNT}, s{sCNT}, 1
    s_cmp_lg_u32 s{sCNT}, {cfg.local_tries}
    s_cbranch_scc1 {N}
    s_add_u32 s53, s53, {WS_QPB - WS_QPA}
    s_add_u32 s54, s54, {WS_QPB - WS_QPA}
    {N}:
    s_cmp_lt_u32 s{sCNT}, {cfg.spin}
    s_cbranch_scc1 {L}
    """)
    a(f"{D}:")
    stamp(3)
    if cfg.stamps:
        a(f"s_mul_i32 s{sTMP}, s{sCNT}, 100\ns_add_u32 s{STAMP0+28}, s{STAMP0}, s{sTMP}\ns_addc_u32 s{STAMP0+29}, s{STAMP0+1}, 0")
    for i in range(0, 8, 2):
        a(f"v_add_f32 v{vWQ+4*i}, v{vWQ+4*i}, v{vWQ+4*i+4}\nv_add_f32 v{vWQ+4*i+1}, v{vWQ+4*i+1}, v{vWQ+4*i+5}")
    for i in range(0, 8, 4):
        a(f"v_add_f32 v{vWQ+4*i}, v{vWQ+4*i}, v{vWQ+4*i+8}\nv_add_f32 v{vWQ+4*i+1}, v{vWQ+4*i+1}, v{vWQ+4*i+9}")
    a(f"v_add_f32 v{vWQ}, v{vWQ}, v{vWQ+16}\nv_add_f32 v{vWQ+1}, v{vWQ+1}, v{vWQ+17}")
    vQ = 48
    a(f"""
    v_cvt_pk_bf16_f32 v{vQ}, v{vWQ}, v{vWQ+1}
    v_cvt_pk_bf16_f32 v{vQ+1}, v{vWQ}, v{vWQ+1}
    v_permlane16_swap_b32 v{vQ}, v{vQ+1}
    v_mov_b32 v{vQ+2}, v{vQ}
    v_mov_b32 v{vQ+3}, v{vQ+1}
    v_permlane32_swap_b32 v{vQ}, v{vQ+2}
    v_permlane32_swap_b32 v{vQ+1}, v{vQ+3}
    """)
    for e in range(4):
        for i in range(16):
            if e == 0: a(f"v_dot2_f32_bf16 v{vACC+i}, v{vWK+4*i+e}, v{vQ+e}, 0")
            else: a(f"v_dot2c_f32_bf16 v{vACC+i}, v{vWK+4*i+e}, v{vQ+e}")
    vD = 52
    for k in range(8):
        a(f"v_add_f32_dpp v{vD+k}, v{vACC+k}, v{vACC+k} row_ror:8 row_mask:0xf bank_mask:0x3")
    for k in range(8):
        a(f"v_add_f32_dpp v{vD+k}, v{vACC+8+k}, v{vACC+8+k} row_ror:8 row_mask:0xf bank_mask:0xc")
    for k in range(4):
        a(f"v_add_f32_dpp v{vACC+k}, v{vD+k}, v{vD+k} row_half_mirror row_mask:0xf bank_mask:0x5")
    for k in range(4):
        a(f"v_add_f32_dpp v{vACC+k}, v{vD+4+k}, v{vD+4+k} row_half_mirror row_mask:0xf bank_mask:0xa")
    for m in ("quad_perm:[1,0,3,2]", "quad_perm:[2,3,0,1]"):
        for k in range(4):
            a(f"v_add_f32_dpp v{vACC+k}, v{vACC+k}, v{vACC+k} {m} {DPPALL}")
    scale = struct.unpack("<I", struct.pack("<f", (128 ** -0.5) * math.log2(math.e)))[0]
    for k in range(4): a(f"v_mul_f32 v{vACC+k}, {hex(scale)}, v{vACC+k}")
    a(f"""
    v_cvt_pk_bf16_f32 v{vACC}, v{vACC}, v{vACC+1}
    s_mov_b32 exec_lo, 0x22222222
    s_mov_b32 exec_hi, 0x22222222
    v_cvt_pk_bf16_f32 v{vACC}, v{vACC+2}, v{vACC+3}
    s_mov_b32 exec_lo, 0x44444444
    s_mov_b32 exec_hi, 0x44444444
    v_mov_b32 v{vACC}, s{sT}
    s_mov_b32 exec_lo, 0x88888888
    s_mov_b32 exec_hi, 0x88888888
    v_mov_b32 v{vACC}, s{sT+1}
    s_mov_b64 exec, -1
    v_lshlrev_b32 v8, 2, v{vL}
    s_lshl_b32 s53, s{sH}, 11
    s_add_u32 s53, s53, {WS_QL}
    s_lshl_b32 s52, s{sJ}, 8
    s_add_u32 s52, s52, s53
    buffer_store_dword v{vACC}, v8, {WS}, s52 offen sc1
    s_setprio 0
    v_mov_b32 v4, 1
    v_mov_b32 v5, 1
    v_mov_b32 v6, s{sT}
    v_mov_b32 v7, s{sT+1}
    ds_write_b128 v{vSC}, v[4:7] offset:{FL_OWN}
    """)
    stamp(4)
    a("s_branch L_qgather")

    a("L_hx:")
    LN = a.label("nf")
    a(f"""
    s_cmp_lg_u32 s{sWAVE}, 1
    s_cbranch_scc1 {LN}
    v_mov_b32 v6, 0
    v_lshl_add_u32 v7, v{vL}, 2, v{vSC}
    ds_write_b32 v7, v6
    s_waitcnt lgkmcnt(0)
    {LN}:
    """)
    a("s_barrier")
    if cfg.sent_op:
        LCD = a.label("cd")
        for k in range(4): a(f"v_mov_b32 v{8+k}, -1")
        a(f"""
        s_cmp_eq_u32 s{sWAVE}, 1
        s_cbranch_scc1 {LCD}
        v_lshrrev_b32 v6, 3, v{vL}
        v_lshlrev_b32 v7, 2, v6
        v_xor_b32 v7, s{sP}, v7
        v_lshlrev_b32 v6, 18, v6
        v_lshl_add_u32 v6, v7, 7, v6
        v_and_b32 v7, 7, v{vL}
        v_lshl_add_u32 v6, v7, 4, v6
        s_sub_u32 s53, s{sWAVE}, 2
        s_lshl_b32 s53, s53, 17
        s_add_u32 s52, s53, {WS_OP}
        """)
        for v in range(4):
            for i in range(4):
                a(f"s_add_u32 s53, s52, {v*32768 + i*(8<<18)}")
                a(f"buffer_store_dwordx4 v[8:11], v6, {WS}, s53 offen sc1")
            a("s_waitcnt vmcnt(2)")
        a("s_waitcnt vmcnt(0)")
        a(f"{LCD}:")
        stamp(1)
    wait_flags(FL_OWN, 4, vSC, n=4, first=True)
    a(f"v_readfirstlane_b32 s{sT}, v6\nv_readfirstlane_b32 s{sT+1}, v7")

    a("L_qgather:")
    vG = 64
    a(f"""
    s_lshl_b32 s53, s{sWAVE}, 14
    s_add_u32 s53, s53, {WS_QL}
    v_lshrrev_b32 v8, 4, v{vL}
    v_lshlrev_b32 v8, 12, v8
    v_and_b32 v9, 1, v{vL}
    v_lshl_add_u32 v8, v9, 3, v8
    s_lshl_b32 s52, s{sWAVE}, 10
    s_add_u32 s52, s52, {QIMG}
    v_add_u32 v8, s52, v8
    v_bfe_u32 v9, v{vL}, 1, 3
    s_and_b32 s52, s{sWAVE}, 1
    s_lshl_b32 s52, s52, 1
    v_xor_b32 v9, s52, v9
    s_mov_b32 s58, 0xff
    s_mov_b32 s59, 0x80
    """)
    for gi, gx in enumerate((0, 4, 1, 5)):
        a(f"v_xor_b32 v10, {gx}, v9\nv_lshl_add_u32 v{12+gi}, v10, 4, v8")
    L = a.label("ql"); D = a.label("qld")
    a(f"s_mov_b32 s{sCNT}, {cfg.spin}")
    a(f"{L}:")
    for g in range(8):
        K = a.label("qs")
        a(f"s_bitcmp1_b32 s59, {g}\ns_cbranch_scc0 {K}")
        a(f"s_add_u32 s54, s53, {g*2048}")
        a(f"buffer_load_dwordx4 {V(vG+8*g,4)}, v{vL16}, {WS}, s54 offen sc1")
        a(f"buffer_load_dwordx4 {V(vG+8*g+4,4)}, v{vL16}, {WS}, s54 offen offset:1024 sc1")
        a(f"{K}:")
    a("s_waitcnt vmcnt(0)")
    for g in range(8):
        K = a.label("qc")
        a(f"s_bitcmp1_b32 s59, {g}\ns_cbranch_scc0 {K}")
        a(f"v_cmp_eq_u64 s[56:57], {TAG}, {V(vG+8*g+2,2)}")
        a(f"v_cmp_eq_u64 vcc, {TAG}, {V(vG+8*g+6,2)}")
        a(f"s_and_b64 s[56:57], s[56:57], vcc\ns_cmp_eq_u64 s[56:57], -1\ns_cbranch_scc0 {K}")
        a(f"ds_write_b64 v{12 + (g>>1)}, {V(vG+8*g,2)} offset:{g*128}")
        a(f"ds_write_b64 v{12 + (g>>1)}, {V(vG+8*g+4,2)} offset:{16384 + g*128}")
        a(f"s_bitset0_b32 s58, {g}")
        a(f"{K}:")
    a(f"""
    s_cmp_eq_u32 s58, 0
    s_cbranch_scc1 {D}
    s_bitcmp1_b32 s58, 7
    s_cselect_b32 s59, 0x80, s58
    s_sub_u32 s{sCNT}, s{sCNT}, 1
    s_cmp_lg_u32 s{sCNT}, 0
    s_cbranch_scc1 {L}
    {D}:
    s_waitcnt lgkmcnt(0)
    v_mov_b32 v6, s{sWAVE}
    v_lshl_add_u32 v6, v6, 2, v{vSC}
    """)
    set_flag(FL_QRDY, 7, 6)
    stamp(5)
    wait_flags(FL_DISS, 4, vSC)
    vLW = 128; vFX = 236
    LF1 = a.label("f1"); LF2 = a.label("f2"); LF3 = a.label("f3")
    a(f"""
    s_cmp_eq_u32 s{sWAVE}, 3
    s_cbranch_scc1 {LF3}
    s_cmp_lg_u32 s{sWAVE}, 0
    s_cbranch_scc1 {LF1}
    """)
    srd(sRB, sWUV, 0x400000)
    a(f"""
    v_bfe_u32 v6, v{vL}, 4, 1
    v_lshlrev_b32 v6, 5, v6
    v_lshrrev_b32 v7, 5, v{vL}
    v_lshl_add_u32 v6, v7, 2, v6
    v_lshlrev_b32 v6, 13, v6
    v_and_b32 v7, 15, v{vL}
    v_lshl_add_u32 v6, v7, 4, v6
    s_lshl_b32 s54, s{sJ}, 19
    s_lshl_b32 s55, s{sH}, 8
    s_add_u32 s54, s54, s55
    """)
    for i in range(16):
        c = 16*((i >> 3) & 1) + 8*((i >> 2) & 1) + (i & 3)
        a(f"s_add_u32 s55, s54, {c*8192}")
        a(f"buffer_load_dwordx4 {V(vLW+4*i,4)}, v6, {RB}, s55 offen{cfg.nt_l}")
    a(f"""
    s_cmp_lg_u32 s2, 0
    s_cbranch_scc1 L_late
    s_mov_b64 exec, 1
    v_mov_b32 v8, s{sT}
    v_mov_b32 v9, s{sT+1}
    v_mov_b32 v10, 0
    buffer_store_dwordx2 v[8:9], v10, {WS}, 0 offen sc1
    s_mov_b64 exec, -1
    s_branch L_late
    """)
    a(f"{LF3}:")
    srd(sRB, sWO, 0x400000)
    a(f"""
    s_lshl_b32 s54, s{sH}, 17
    s_and_b32 s55, s{sJ}, 1
    s_lshl_b32 s55, s55, 16
    s_add_u32 s54, s54, s55
    s_lshr_b32 s55, s{sJ}, 1
    s_lshl_b32 s55, s55, 11
    s_add_u32 s54, s54, s55
    """)
    for g in range(8):
        for t in range(2):
            a(f"buffer_load_dwordx4 {V(vLW+8*g+4*t,4)}, v{vL16}, {RB}, s54 offen offset:{t*1024}{cfg.nt_l}")
        if g < 7: a("s_add_u32 s54, s54, 8192")
    a("s_branch L_late")
    a(f"{LF1}:")
    a(f"""
    s_cmp_ge_u32 s{sFI}, 176
    s_cbranch_scc1 L_late
    s_cmp_eq_u32 s{sWAVE}, 2
    s_cbranch_scc1 {LF2}
    """)
    srd(sRA, sX, 1024); srd(sRB, sW1, 512 * 2752)
    a(f"""
    buffer_load_dwordx4 {V(vFX,4)}, v{vL16}, {RA}, 0 offen
    v_mul_u32_u24 v4, {8*2752}, v{vL}
    s_lshl_b32 s52, s{sFI}, 4
    """)
    for i in range(8):
        a(f"buffer_load_dwordx4 {V(vLW+4*i,4)}, v4, {RB}, s52 offen")
        a(f"s_add_u32 s52, s52, 2752")
    a(f"s_branch L_late")
    a(f"{LF2}:")
    srd(sRB, sW2, 1376 * 1024)
    a(f"s_lshl_b32 s52, s{sFI}, 13")
    for f in range(8):
        a(f"buffer_load_dwordx4 {V(vLW+4*f,4)}, v{vL16}, {RB}, s52 offen offset:{(f%4)*1024}{cfg.nt_l}")
        if f == 3: a("s_add_u32 s52, s52, 4096")
    a("s_branch L_late")

    a("L_att:")
    srd(sRA, sCKV, 0x2000000)
    a(f"""
    v_lshrrev_b32 v6, 3, v{vL}
    v_bfe_u32 v7, v6, 1, 1
    v_lshlrev_b32 v7, 2, v7
    v_bfe_u32 v8, v6, 2, 1
    v_or_b32 v7, v7, v8
    v_and_b32 v8, 7, v{vL}
    v_xor_b32 v7, v7, v8
    v_lshlrev_b32 v6, 10, v6
    v_lshl_add_u32 v4, v7, 4, v6
    v_xor_b32 v5, 32, v4
    s_lshl_b32 s52, s2, 17
    s_lshl_b32 s53, s{sA}, 15
    s_add_u32 s52, s52, s53
    s_lshl_b32 s53, s{sA}, 12
    s_mov_b32 s{sRDY}, 0
    v_and_b32 v6, 31, v{vL}
    v_bfe_u32 v7, v6, 1, 1
    v_lshlrev_b32 v7, 2, v7
    v_bfe_u32 v8, v6, 2, 2
    v_or_b32 v7, v7, v8
    v_lshrrev_b32 v8, 5, v{vL}
    v_xor_b32 v7, v7, v8
    v_lshlrev_b32 v6, 7, v6
    v_lshl_add_u32 v6, v7, 4, v6
    """)
    vAQ, vA0, vA1 = 12, 16, 20
    for t in range(4):
        a(f"v_xor_b32 v7, {32*t}, v6")
        a(f"v_add_u32 v{vAQ+t}, {QIMG}, v7")
        a(f"v_add_u32 v{vA0+t}, s53, v7")
        a(f"v_add_u32 v{vA1+t}, 0x10000, v{vA0+t}")
    a(f"v_mov_b32 v6, s{sA}\nv_lshl_add_u32 v6, v6, 2, v{vSC}")
    a("s_barrier")
    def dma(rg, sm, so):
        a(f"s_add_u32 m0, s{sm}, {rg*1024}")
        a(f"s_add_u32 s54, s{so}, {rg*8192}")
        a(f"buffer_load_dwordx4 v{4 + (rg&1)}, {RA}, s54 offen{cfg.nt_c} lds")
    a("s_mov_b32 s55, s53\ns_mov_b32 s56, s52\ns_mov_b32 s57, 7")
    LD = a.label("dma")
    a(f"{LD}:")
    for rg in range(4):
        dma(rg, 55, 56)
        K = a.label("sk")
        a(f"s_cmp_lg_u32 s{sRDY}, 0\ns_cbranch_scc1 {K}")
        if rg & 1:
            a(f"ds_read_b128 v[8:11], v{vSC} offset:{FL_QRDY}")
            a(f"s_waitcnt vmcnt({cfg.depth-1}) lgkmcnt(0)")
            a("v_and_b32 v8, v8, v9\nv_and_b32 v10, v10, v11\nv_and_b32 v8, v8, v10")
            a(f"v_readfirstlane_b32 s{sRDY}, v8")
        else:
            a(f"s_waitcnt vmcnt({cfg.depth-1})")
        a(f"{K}:")
    a(f"s_add_u32 s55, s55, 16384\ns_add_u32 s56, s56, 128\ns_sub_u32 s57, s57, 1\ns_cmp_lg_u32 s57, 0\ns_cbranch_scc1 {LD}")
    stamp(1)
    wait_flags(FL_QRDY, 8, vSC)
    stamp(2)
    vQF = 128
    for s in range(8):
        for t in range(4):
            a(f"ds_read_b128 {V(vQF+(4*s+t)*4,4)}, v{vAQ+t} offset:{s*4096}")
        if s == 3:
            a("s_waitcnt lgkmcnt(0)")
            set_flag(FL_QCONS, 7, 6)
    a(f"ds_read_b64 v[24:25], v{vSC} offset:{FL_OWN+8}")
    wait_flags(FL_QCONS, 8, vSC)
    for rg in range(4): dma(rg, 55, 56)
    set_flag(FL_DISS, 7, 6)
    a(f"v_readfirstlane_b32 s{sT}, v24\nv_readfirstlane_b32 s{sT+1}, v25")
    stamp(3)
    vS = 32; vAF = 64
    def areads(s):
        for t in range(4):
            base = vA0 if s < 4 else vA1
            a(f"ds_read_b128 {V(vAF+(s&1)*16+4*t,4)}, v{base+t} offset:{(s&3)*16384}")
    def mfmas(s):
        for t in range(4):
            c = "0" if (s == 0 and t == 0) else V(vS, 16)
            a(f"v_mfma_f32_32x32x16_bf16 {V(vS,16)}, {V(vAF+(s&1)*16+4*t,4)}, {V(vQF+(4*s+t)*4,4)}, {c}")
    a("s_waitcnt vmcnt(28)")
    areads(0)
    for s in range(6):
        a(f"s_waitcnt vmcnt({4*(7-(s+1))})")
        areads(s + 1)
        a("s_waitcnt lgkmcnt(4)")
        mfmas(s)
    a("s_waitcnt lgkmcnt(0)")
    mfmas(6)
    def pv_addrs():
        a(f"""
        v_lshrrev_b32 v24, 5, v{vL}
        v_bfe_u32 v25, v{vL}, 2, 2
        v_lshl_add_u32 v25, v24, 2, v25
        v_lshlrev_b32 v25, 7, v25
        v_and_b32 v26, 1, v{vL}
        v_lshl_add_u32 v25, v26, 3, v25
        s_lshl_b32 s54, s{sWAVE}, 14
        v_add_u32 v25, s54, v25
        v_bfe_u32 v26, v{vL}, 4, 1
        v_lshlrev_b32 v26, 1, v26
        v_bfe_u32 v27, v{vL}, 1, 1
        v_or_b32 v26, v26, v27
        v_bfe_u32 v27, v{vL}, 3, 1
        v_lshl_or_b32 v27, v27, 2, v24
        v_xor_b32 v26, v26, v27
        """)
        for e in range(2):
            for ct in range(2):
                a(f"v_xor_b32 v27, {(4*ct) ^ (2*e)}, v26")
                a(f"v_lshl_add_u32 v{28+2*e+ct}, v27, 4, v25")
        a(f"v_and_b32 v24, 31, v{vL}\nv_lshl_add_u32 v24, v24, 4, v{vSC}")
    pv_addrs()
    a(f"s_lshl_b32 s54, s{sA}, 2\nv_add_u32 v25, s54, v24")
    a(f"s_lshl_b32 s54, s{sA}, 11\ns_add_u32 s54, s54, {PBUF}\nv_add_u32 v26, s54, v{vL16}")
    a("s_waitcnt vmcnt(0)")
    areads(7)
    for t in range(4):
        a(f"s_waitcnt lgkmcnt({3-t})")
        a(f"v_mfma_f32_32x32x16_bf16 {V(vS,16)}, {V(vAF+16+4*t,4)}, {V(vQF+(28+t)*4,4)}, {V(vS,16)}")
    stamp(4)
    a(f"v_max3_f32 v8, v{vS}, v{vS+1}, v{vS+2}\nv_max3_f32 v9, v{vS+3}, v{vS+4}, v{vS+5}")
    a(f"v_max3_f32 v10, v{vS+6}, v{vS+7}, v{vS+8}\nv_max3_f32 v11, v{vS+9}, v{vS+10}, v{vS+11}")
    a(f"v_max3_f32 v8, v8, v{vS+12}, v{vS+13}\nv_max3_f32 v9, v9, v{vS+14}, v{vS+15}")
    a(f"v_max3_f32 v8, v8, v9, v10\nv_max_f32 v8, v8, v11\nv_max_f32 v9, v8, v11")
    a(f"v_permlane32_swap_b32 v8, v9\nv_max_f32 v8, v8, v9")
    a(f"ds_write_b32 v25, v8 offset:{SC_MX}")
    a("s_waitcnt lgkmcnt(0)")
    a("s_barrier")
    stamp(6)
    vCF = 64
    def creads():
        for ks in range(8):
            for ct in range(2):
                for e in range(2):
                    a(f"ds_read_b64_tr_b16 {V(vCF+(ct*8+ks)*4+2*e,2)}, v{28+2*e+ct} offset:{(2*ks+e)*1024}")
    a(f"ds_read_b128 v[8:11], v24 offset:{SC_MX}")
    a("s_waitcnt lgkmcnt(0)")
    a("v_max3_f32 v8, v8, v9, v10\nv_max_f32 v8, v8, v11")
    for r in range(16): a(f"v_sub_f32 v{vS+r}, v{vS+r}, v8")
    for r in range(16): a(f"v_exp_f32 v{vS+r}, v{vS+r}")
    for k in range(8): a(f"v_cvt_pk_bf16_f32 v{48+k}, v{vS+2*k}, v{vS+2*k+1}")
    a(f"ds_write_b128 v26, v[48:51]\nds_write_b128 v26, v[52:55] offset:1024")
    for k in range(8): a(f"v_add_f32 v{vS+k}, v{vS+k}, v{vS+k+8}")
    for k in range(4): a(f"v_add_f32 v{vS+k}, v{vS+k}, v{vS+k+4}")
    a(f"v_add_f32 v{vS}, v{vS}, v{vS+2}\nv_add_f32 v{vS+1}, v{vS+1}, v{vS+3}\nv_add_f32 v9, v{vS}, v{vS+1}\nv_add_f32 v{vS}, v{vS}, v{vS+1}")
    a(f"v_permlane32_swap_b32 v9, v{vS}\nv_add_f32 v{vS}, v{vS}, v9")
    a(f"ds_write_b32 v25, v{vS} offset:{SC_SM}")
    a("s_waitcnt lgkmcnt(0)")
    a("s_barrier")
    creads()
    a("s_branch L_pv")
    a("L_late:")
    pv_addrs()
    a("s_barrier")
    stamp(6)
    creads()
    a("s_barrier")
    a("L_pv:")
    stamp(7)
    vO = 32
    PF = [192, 196, 200, 204]
    a(f"v_add_u32 v9, {PBUF}, v{vL16}")
    a(f"ds_read_b128 v[12:15], v24 offset:{SC_SM}")
    a(f"ds_read_b128 v[16:19], v24 offset:{SC_MX}")
    for ks in range(4): a(f"ds_read_b128 {V(PF[ks],4)}, v9 offset:{ks*1024}")
    def lse_store():
        K = a.label("ls")
        a(f"s_cmp_lg_u32 s{sWAVE}, 7\ns_cbranch_scc1 {K}")
        a(f"s_mov_b32 exec_hi, 0")
        a(f"buffer_store_dwordx4 v[16:19], v{vL16}, {WS}, s58 offen sc1")
        a(f"s_mov_b64 exec, -1")
        a(f"{K}:")
    for ks in range(8):
        a(f"s_waitcnt lgkmcnt({min(3, 7-ks)})")
        for ct in range(2):
            c = "0" if ks == 0 else V(vO+16*ct, 16)
            a(f"v_mfma_f32_32x32x16_bf16 {V(vO+16*ct,16)}, {V(vCF+(ct*8+ks)*4,4)}, {V(PF[ks%4],4)}, {c}")
        if ks + 4 < 8:
            a(f"ds_read_b128 {V(PF[ks%4],4)}, v9 offset:{(ks+4)*1024}")
        if ks == 0:
            a("v_add_f32 v12, v12, v13\nv_add_f32 v14, v14, v15\nv_add_f32 v12, v12, v14")
            a("v_max3_f32 v16, v16, v17, v18\nv_max_f32 v16, v16, v19")
            a("v_log_f32 v13, v12\nv_rcp_f32 v12, v12\nv_add_f32 v16, v13, v16")
            a(f"v_mov_b32 v18, s{sT}\nv_mov_b32 v19, s{sT+1}")
            a(f"s_lshl_b32 s58, s{sP}, 9\ns_add_u32 s58, s58, {WS_LSE}")
            if cfg.sent_op: lse_store()
        if ks == 1:
            a(f"""
            v_and_b32 v4, 31, v{vL}
            v_lshrrev_b32 v5, 5, v{vL}
            v_lshlrev_b32 v5, 2, v5
            v_and_b32 v6, 7, v{vL}
            v_xor_b32 v5, v5, v6
            v_lshlrev_b32 v4, 7, v4
            s_lshl_b32 s54, s{sWAVE}, 14
            v_add_u32 v4, s54, v4
            """)
        if ks == 2:
            for q in range(4):
                a(f"v_xor_b32 v6, {q}, v5\nv_lshl_add_u32 v{20+q}, v6, 4, v4")
        if ks == 3:
            a(f"""
            v_lshrrev_b32 v4, 3, v{vL}
            v_and_b32 v5, 7, v{vL}
            v_xor_b32 v6, v4, v5
            v_lshlrev_b32 v7, 7, v4
            v_lshl_add_u32 v7, v6, 4, v7
            v_add_u32 v7, s54, v7
            """)
        if ks == 4:
            a(f"""
            v_lshlrev_b32 v6, 2, v4
            v_xor_b32 v6, s{sP}, v6
            v_lshlrev_b32 v4, 18, v4
            v_lshl_add_u32 v4, v6, 7, v4
            v_lshl_add_u32 v4, v5, 4, v4
            s_lshl_b32 s55, s{sWAVE}, 15
            s_add_u32 s55, s55, {WS_OP}
            """)
    for ct in range(2):
        for r in range(16): a(f"v_mul_f32 v{vO+16*ct+r}, v{vO+16*ct+r}, v12")
        for k in range(8):
            a(f"v_cvt_pk_bf16_f32 v{64+8*ct+k}, v{vO+16*ct+2*k}, v{vO+16*ct+2*k+1}")
        if cfg.sent_op:
            for k in range(8): a(f"v_min_u32 v{64+8*ct+k}, -2, v{64+8*ct+k}")
        for u in range(2):
            a(f"ds_write_b128 v{20+2*ct+u}, {V(64+8*ct+4*u,4)}")
    a("s_waitcnt lgkmcnt(0)")
    for i in range(4): a(f"ds_read_b128 {V(80+4*i,4)}, v7 offset:{i*1024}")
    for i in range(4):
        a(f"s_waitcnt lgkmcnt({3-i})")
        a(f"buffer_store_dwordx4 {V(80+4*i,4)}, v4, {WS}, s55 offen sc1")
        if i < 3: a(f"s_add_u32 s55, s55, {8<<18}")
    stamp(8)
    if not cfg.sent_op:
        a("s_waitcnt vmcnt(0)")
        a("s_barrier")
        lse_store()
        stamp(9)
    else:
        a("s_waitcnt vmcnt(4)")
    vWP = 192
    LW1 = a.label("w1"); LWD = a.label("wd")
    a(f"""
    s_cmp_gt_u32 s{sWAVE}, 3
    s_cbranch_scc1 {LWD}
    s_cmp_eq_u32 s{sWAVE}, 1
    s_cbranch_scc1 {LW1}
    """)
    for k in range(8): pair_rows(vLW, vWP + 8*k, k)
    a(f"""
    s_cmp_lg_u32 s{sWAVE}, 2
    s_cbranch_scc1 {LWD}
    s_cmp_ge_u32 s{sFI}, 176
    s_cbranch_scc1 {LWD}
    """)
    fill_tags(96, 4)
    a(f"""
    v_lshrrev_b32 v28, 3, v{vL}
    v_lshlrev_b32 v28, 15, v28
    v_and_b32 v29, 7, v{vL}
    v_lshl_add_u32 v28, v29, 4, v28
    s_lshl_b32 s53, s{sFI}, 7
    s_add_u32 s53, s53, {WS_FF}
    """)
    wait_flags(FL_HRDY, 4, vSC, n=1)
    a(f"ds_read_b128 v[4:7], v{vSC} offset:{SC_HV}\ns_waitcnt lgkmcnt(0)")
    for k in range(4):
        for e in range(8):
            if k == 0: a(f"v_dot2_f32_bf16 v{QA(96,e)}, v{vWP+8*k+e}, v{4+k}, 0")
            else: a(f"v_dot2c_f32_bf16 v{QA(96,e)}, v{vWP+8*k+e}, v{4+k}")
    for q in range(4):
        a(f"buffer_store_dwordx4 {V(96+4*q,4)}, v28, {WS}, s53 offen sc1")
        if q < 3: a(f"s_add_u32 s53, s53, {8*32768}")
    a(f"s_branch {LWD}")
    a(f"{LW1}:")
    a(f"s_cmp_ge_u32 s{sFI}, 176\ns_cbranch_scc1 {LWD}")
    ln_stats(vFX, 32)
    ln_apply(vFX, 4, 32, 34)
    for k in range(4):
        pair_rows(vLW, 48, k)
        for e in range(8):
            if k == 0: a(f"v_dot2_f32_bf16 v{36+e}, v{48+e}, v{vFX+k}, 0")
            else: a(f"v_dot2c_f32_bf16 v{36+e}, v{48+e}, v{vFX+k}")
    rs8to2(36)
    for m in ("quad_perm:[1,0,3,2]", "quad_perm:[2,3,0,1]", "row_half_mirror", "row_mirror"):
        for k in range(2):
            a(f"v_add_f32_dpp v{36+k}, v{36+k}, v{36+k} {m} {DPPALL}")
    for k in range(2):
        bf16_round(36 + k); silu(36 + k, 40)
    a(f"""
    v_cvt_pk_bf16_f32 v36, v36, v37
    v_lshrrev_b32 v37, 4, v{vL}
    v_lshl_add_u32 v37, v37, 2, v{vSC}
    ds_write_b32 v37, v36 offset:{SC_HV}
    s_waitcnt lgkmcnt(0)
    """)
    set_flag(FL_HRDY, 36, vSC)
    a(f"{LWD}:")
    a(f"""
    v_lshrrev_b32 v4, 3, v{vL}
    s_and_b32 s52, s{sH}, 7
    v_xor_b32 v5, s52, v4
    v_lshlrev_b32 v5, 2, v5
    v_and_b32 v6, 3, v{vL}
    v_add_lshl_u32 v5, v5, v6, 9
    v_lshlrev_b32 v4, 9, v4
    v_and_b32 v6, 7, v{vL}
    v_lshl_add_u32 v4, v6, 4, v4
    s_lshl_b32 s52, s{sH}, 4
    s_add_u32 s52, s52, {WS_LSE}
    s_lshl_b32 s53, s{sWAVE}, 14
    s_add_u32 s53, s53, s52
    s_lshl_b32 s54, s{sH}, 3
    s_add_u32 s54, s54, s{sJ}
    s_lshl_b32 s54, s54, 15
    s_lshl_b32 s55, s{sWAVE}, 12
    s_add_u32 s54, s54, s55
    s_add_u32 s54, s54, {WS_OP}
    v_lshlrev_b32 v6, 5, v6
    v_lshrrev_b32 v7, 4, v{vL}
    v_lshl_add_u32 v6, v7, 3, v6
    s_lshl_b32 s55, s{sWAVE}, 8
    s_add_u32 s55, s55, {SC + SC_R1}
    v_add_u32 v6, s55, v6
    v_lshl_add_u32 v7, v{vL}, 2, v{vSC}
    s_lshl_b32 s55, s{sWAVE}, 3
    v_add_u32 v20, s55, v{vSC}
    v_and_b32 v21, 7, v{vL}
    v_lshl_add_u32 v21, v21, 3, v{vSC}
    """)
    L = a.label("lse"); D = a.label("lsed")
    a(f"s_mov_b32 s{sCNT}, {cfg.spin}")
    a(f"{L}:")
    a(f"buffer_load_dwordx4 v[8:11], v5, {WS}, s53 offen sc1")
    a("s_waitcnt vmcnt(0)")
    a(f"v_cmp_eq_u64 vcc, {TAG}, v[10:11]\ns_cmp_eq_u64 vcc, -1\ns_cbranch_scc1 {D}")
    a(f"s_sleep 2\ns_sub_u32 s{sCNT}, s{sCNT}, 1\ns_cmp_lg_u32 s{sCNT}, 0\ns_cbranch_scc1 {L}")
    a(f"{D}:")
    stamp(10)
    vM = 48
    def oloads():
        for i in range(4):
            a(f"buffer_load_dwordx4 {V(vM+4*i,4)}, v4, {WS}, s54 offen offset:{i*128} sc1")
    oloads()
    a("v_mov_b32 v16, v8")
    allreduce64(16, 17, "v_max_f32")
    a("v_sub_f32 v17, v8, v16\nv_exp_f32 v17, v17")
    allreduce64(17, 18)
    a(f"ds_write_b64 v20, v[16:17] offset:{SC_ST}\ns_waitcnt lgkmcnt(0)\ns_barrier")
    a(f"ds_read_b64 v[16:17], v21 offset:{SC_ST}\ns_waitcnt lgkmcnt(0)")
    a("v_mov_b32 v18, v16")
    for m in ("quad_perm:[1,0,3,2]", "quad_perm:[2,3,0,1]", "row_half_mirror"):
        a(f"v_max_f32_dpp v18, v18, v18 {m} {DPPALL}")
    a("v_sub_f32 v16, v16, v18\nv_sub_f32 v8, v8, v18\nv_exp_f32 v16, v16\nv_exp_f32 v8, v8\nv_mul_f32 v16, v16, v17")
    for m in ("quad_perm:[1,0,3,2]", "quad_perm:[2,3,0,1]", "row_half_mirror"):
        a(f"v_add_f32_dpp v16, v16, v16 {m} {DPPALL}")
    a("v_rcp_f32 v16, v16\nv_add_f32 v8, v8, v8\nv_mul_f32 v8, v8, v16")
    for i in range(4): a(f"v_mov_b32_dpp v{12+i}, v8 quad_perm:[{i},{i},{i},{i}] {DPPALL}")
    if cfg.sent_op:
        L = a.label("op"); D = a.label("opd")
        a(f"s_mov_b32 s{sCNT}, {cfg.spin}")
        a(f"{L}:")
        a("s_waitcnt vmcnt(0)")
        for i in range(4):
            a(f"v_max3_u32 v{16+i}, v{vM+4*i}, v{vM+4*i+1}, v{vM+4*i+2}")
        a(f"v_max3_u32 v16, v16, v{vM+3}, v{vM+7}\nv_max3_u32 v17, v17, v{vM+11}, v{vM+15}")
        a(f"v_max3_u32 v16, v16, v17, v18\nv_max_u32 v16, v16, v19")
        a(f"v_cmp_eq_u32 vcc, -1, v16\ns_cbranch_vccz {D}")
        oloads()
        a(f"s_sub_u32 s{sCNT}, s{sCNT}, 1\ns_cmp_lg_u32 s{sCNT}, 0\ns_cbranch_scc1 {L}")
        a("s_waitcnt vmcnt(0)")
        a(f"{D}:")
    vB = 32
    for i in range(4):
        if not cfg.sent_op: a(f"s_waitcnt vmcnt({3-i})")
        for e in range(4):
            a(f"v_lshlrev_b32 v{40+2*e}, 16, v{vM+4*i+e}\nv_and_b32 v{41+2*e}, 0xffff0000, v{vM+4*i+e}")
        for e in range(8):
            if i == 0: a(f"v_mul_f32 v{vB+e}, v{40+e}, v12")
            else: a(f"v_fmac_f32 v{vB+e}, v{40+e}, v{12+i}")
    stamp(11)
    rs8to2(vB)
    for k in range(2): a(f"v_add_f32_dpp v{vB+k}, v{vB+k}, v{vB+k} row_ror:8 {DPPALL}")
    a(f"ds_write_b64 v6, {V(vB,2)}\ns_waitcnt lgkmcnt(0)\ns_barrier")
    stamp(12)
    a(f"""
    s_cmp_eq_u32 s{sWAVE}, 3
    s_cbranch_scc1 L_w3
    s_cmp_lg_u32 s{sWAVE}, 0
    s_cbranch_scc1 L_red
    """)
    for i in range(8): a(f"ds_read_b32 v{8+i}, v7 offset:{SC_R1 + i*256}")
    for e in range(8): a(f"v_mov_b32 v{vB+e}, 0")
    a(f"""
    v_lshrrev_b32 v4, 3, v{vL}
    v_lshlrev_b32 v4, 10, v4
    v_and_b32 v5, 7, v{vL}
    v_lshl_add_u32 v4, v5, 4, v4
    s_lshl_b32 s52, s{sH}, 13
    s_lshl_b32 s53, s{sJ}, 7
    s_add_u32 s52, s52, s53
    s_add_u32 s52, s52, {WS_CXA}
    s_add_u32 s53, s52, {WS_CXB - WS_CXA}
    s_waitcnt lgkmcnt(0)
    """)
    for k in range(4): a(f"v_add_f32 v{8+k}, v{8+k}, v{12+k}")
    a("v_add_f32 v8, v8, v9\nv_add_f32 v10, v10, v11\nv_add_f32 v8, v8, v10")
    a(f"v_mov_b32_dpp v9, v8 quad_perm:[1,0,3,2] {DPPALL}")
    a("v_cvt_pk_bf16_f32 v8, v8, v9")
    for k in range(8):
        for e in range(8):
            a(f"v_dot2c_f32_bf16_dpp v{vB+e}, v8, v{vWP+8*k+e} row_newbcast:{2*k} {DPPALL}")
    rs8to2(vB)
    a(f"""
    v_mov_b32 v{vB+2}, s{sT}
    v_mov_b32 v{vB+3}, s{sT+1}
    buffer_store_dwordx4 {V(vB,4)}, v4, {WS}, s52 offen
    buffer_store_dwordx4 {V(vB,4)}, v4, {WS}, s53 offen sc1
    """)
    stamp(13)
    a("s_branch L_fin")
    a("L_w3:")
    a(f"""
    s_lshl_b32 s52, s{sH}, 13
    s_lshl_b32 s53, s{sJ}, 10
    s_add_u32 s52, s52, s53
    s_add_u32 s52, s52, {WS_CXA}
    s_mov_b32 s{sCNT}, 0
    """)
    msg_addr(6, 7, sP)
    for e in range(8): a(f"v_mov_b32 v{QA(vB,e)}, 0")
    fill_tags(vB, 4)
    L = a.label("cx"); D = a.label("cxd"); N = a.label("cxn")
    a(f"""
    {L}:
    buffer_load_dwordx4 v[8:11], v{vL16}, {WS}, s52 offen sc1
    s_waitcnt vmcnt(0)
    v_cmp_eq_u64 vcc, {TAG}, v[10:11]
    s_cmp_eq_u64 vcc, -1
    s_cbranch_scc1 {D}
    s_add_u32 s{sCNT}, s{sCNT}, 1
    s_cmp_lg_u32 s{sCNT}, {cfg.local_tries*8}
    s_cbranch_scc1 {N}
    s_add_u32 s52, s52, {WS_CXB - WS_CXA}
    {N}:
    s_cmp_lt_u32 s{sCNT}, {cfg.spin}
    s_cbranch_scc1 {L}
    {D}:
    """)
    stamp(13)
    for k in range(2): a(f"v_add_f32_dpp v{8+k}, v{8+k}, v{8+k} row_ror:8 {DPPALL}")
    for sw in ("v_permlane16_swap_b32", "v_permlane32_swap_b32"):
        a(f"v_mov_b32 v10, v8\nv_mov_b32 v11, v9\n{sw} v8, v10\n{sw} v9, v11\nv_add_f32 v8, v8, v10\nv_add_f32 v9, v9, v11")
    a("v_cvt_pk_bf16_f32 v8, v8, v9")
    a(f"s_mov_b32 s54, {WS_FA}")
    for q in range(4):
        for g in range(8):
            for e in (2*q, 2*q+1):
                a(f"v_dot2c_f32_bf16_dpp v{QA(vB,e)}, v8, v{vWP+8*g+e} row_newbcast:{g} {DPPALL}")
        a(f"buffer_store_dwordx4 {V(vB+4*q,4)}, v6, {WS}, s54 offen sc1")
        if q < 3: a(f"s_add_u32 s54, s54, {8*32768}")
    stamp(14)
    a("s_branch L_fin")
    a("L_red:")
    a(f"s_cmp_ge_u32 s2, 32\ns_cbranch_scc1 L_fin")
    a(f"s_cmp_eq_u32 s{sWAVE}, 2\ns_cbranch_scc1 L_fin")
    def gather(nl, sbase, canary):
        L = a.label("fg"); D = a.label("fgd"); L0 = a.label("fc")
        a(f"s_mov_b32 s{sCNT}, {cfg.spin}")
        if canary:
            a(f"""
            {L0}:
            buffer_load_dwordx4 v[8:11], v{vL16}, {WS}, s{sbase} offen sc1
            s_waitcnt vmcnt(0)
            v_cmp_eq_u64 vcc, {TAG}, v[10:11]
            s_cmp_eq_u64 vcc, -1
            s_cbranch_scc1 {L}
            s_sub_u32 s{sCNT}, s{sCNT}, 1
            s_cmp_lg_u32 s{sCNT}, 0
            s_cbranch_scc1 {L0}
            s_mov_b32 s{sCNT}, 1
            """)
        a(f"{L}:")
        a(f"s_mov_b32 s55, s{sbase}")
        for i in range(nl):
            a(f"buffer_load_dwordx4 {V(8+4*i,4)}, v{vL16}, {WS}, s55 offen offset:{1024*(i%4)} sc1")
            if i % 4 == 3 and i < nl - 1: a("s_add_u32 s55, s55, 4096")
        a("s_waitcnt vmcnt(0)")
        a(f"v_cmp_eq_u64 s[56:57], {TAG}, v[10:11]")
        for i in range(1, nl):
            a(f"v_cmp_eq_u64 vcc, {TAG}, {V(10+4*i,2)}\ns_and_b64 s[56:57], s[56:57], vcc")
        a(f"s_cmp_eq_u64 s[56:57], -1\ns_cbranch_scc1 {D}")
        a(f"s_sub_u32 s{sCNT}, s{sCNT}, 1\ns_cmp_lg_u32 s{sCNT}, 0\ns_cbranch_scc1 {L}")
        a(f"{D}:")
        n = nl
        while n > 1:
            h = (n + 1) // 2
            for i in range(n - h):
                a(f"v_add_f32 v{8+4*i}, v{8+4*i}, v{8+4*(i+h)}\nv_add_f32 v{9+4*i}, v{9+4*i}, v{9+4*(i+h)}")
            n = h
        a("v_permlane32_swap_b32 v8, v9\nv_add_f32 v8, v8, v9")
        a("v_mov_b32 v9, v8\nv_permlane16_swap_b32 v8, v9\nv_add_f32 v8, v8, v9")
        a(f"v_add_f32_dpp v8, v8, v8 row_ror:8 {DPPALL}")
    a(f"""
    v_and_b32 v4, 7, v{vL}
    v_lshrrev_b32 v5, 5, v{vL}
    v_lshl_add_u32 v4, v4, 1, v5
    v_lshl_add_u32 v5, v4, 2, v{vSC}
    s_lshl_b32 s52, s2, 15
    s_cmp_lg_u32 s{sWAVE}, 1
    s_cbranch_scc1 L_fa
    s_add_u32 s52, s52, {WS_FF}
    """)
    gather(22, 52, False)
    bf16_round(8); silu(8, 12); bf16_round(8)
    a(f"ds_write_b32 v5, v8 offset:{SC_R4}\ns_waitcnt lgkmcnt(0)")
    stamp(13)
    a("s_branch L_fin")
    a("L_fa:")
    srd(sRA, sX, 1024); srd(sRB, sOUT, 1024)
    a(f"""
    s_lshl_b32 s53, s{sA}, 13
    s_add_u32 s52, s52, s53
    s_add_u32 s52, s52, {WS_FA}
    s_lshl_b32 s55, s{sA}, 6
    v_add_u32 v5, s55, v5
    v_and_b32 v6, 15, v{vL}
    v_lshrrev_b32 v60, 1, v6
    v_lshlrev_b32 v60, 4, v60
    v_and_b32 v61, 1, v6
    v_lshl_add_u32 v60, v61, 1, v60
    s_and_b32 s54, s2, 7
    s_lshl_b32 s54, s54, 7
    s_lshr_b32 s55, s2, 3
    s_lshl_b32 s55, s55, 2
    s_add_u32 s54, s54, s55
    buffer_load_ushort v62, v60, {RA}, s54 offen
    v_lshl_add_u32 v6, v6, 2, v{vSC}
    """)
    gather(8, 52, True)
    a(f"ds_write_b32 v5, v8 offset:{SC_R3}")
    stamp(13)
    a("s_waitcnt lgkmcnt(0)\ns_barrier")
    a(f"s_cmp_lg_u32 s{sWAVE}, 4\ns_cbranch_scc1 L_fin")
    a(f"""
    ds_read_b32 v8, v7 offset:{SC_R3}
    ds_read_b32 v10, v6 offset:{SC_R4}
    s_waitcnt lgkmcnt(0)
    """)
    for sw in ("v_permlane32_swap_b32", "v_permlane16_swap_b32"):
        a(f"v_mov_b32 v9, v8\n{sw} v8, v9\nv_add_f32 v8, v8, v9")
    bf16_round(8)
    a("v_mul_f32 v8, v8, v10")
    bf16_round(8)
    a(f"""
    v_lshlrev_b32 v62, 16, v62
    v_add_f32 v8, v8, v62
    v_cvt_pk_bf16_f32 v8, v8, v8
    s_mov_b64 exec, 0xffff
    buffer_store_short v8, v60, {RB}, s54 offen
    s_mov_b64 exec, -1
    """)
    a("L_fin:")
    if cfg.stamps:
        a("s_waitcnt vmcnt(0)")
        stamp(15)
        a(f"""
        s_lshl_b32 s52, s2, 10
        s_lshl_b32 s53, s{sWAVE}, 7
        s_add_u32 s52, s52, s53
        s_add_u32 s52, s52, {WS_STAMP}
        s_mov_b64 exec, 1
        v_mov_b32 v12, 0
        """)
        for k in range(8):
            a(f"v_mov_b32 v8, s{STAMP0+4*k}\nv_mov_b32 v9, s{STAMP0+4*k+1}\nv_mov_b32 v10, s{STAMP0+4*k+2}\nv_mov_b32 v11, s{STAMP0+4*k+3}")
            a(f"buffer_store_dwordx4 v[8:11], v12, {WS}, s52 offen offset:{16*k}")
    a("L_end:\ns_endpgm")
    a("L_codeend:")
    a(".fill 272, 4, 0xBF810000")
    body = "\n".join(hazard.pad(a.lines)) + "\n"
    return wrap(body, 256, 512, LDS_BYTES, vgpr=256, sgpr=102)

if __name__ == "__main__":
    ap = argparse.ArgumentParser()
    ap.add_argument("-o", default="k.s")
    ap.add_argument("--set", nargs="*", default=[])
    args = ap.parse_args()
    cfg = Cfg()
    for kv in args.set:
        k, v = kv.split("=", 1)
        old = getattr(cfg, k)
        if isinstance(old, bool): v = v in ("1", "True", "true")
        elif isinstance(old, int): v = int(v, 0)
        else: v = (" " + v.replace("_", " ")) if v else ""
        setattr(cfg, k, v)
    open(args.o, "w").write(gen(cfg))
```
